```python
import torch

def _softmax(x, axis=-1):
    return torch.softmax(x, dim=axis)
def _gelu(x):
    return torch.nn.functional.gelu(x, approximate="tanh")
def _silu(x):
    return torch.nn.functional.silu(x)
def _sigmoid(x):
    return torch.sigmoid(x)
def _layernorm(x, axis=-1, eps=1e-5):
    m = x.mean(dim=axis, keepdim=True)
    v = x.var(dim=axis, keepdim=True, unbiased=False)
    return (x - m) / torch.sqrt(v + eps)
def _scatter_add(tgt, idx, src, axis=0):
    return tgt.clone().index_add_(axis, idx, src)
def _segment_sum(src, seg, n):
    out = torch.zeros((n,) + src.shape[1:], dtype=src.dtype)
    return out.index_add_(0, seg, src)
def _pad(x, pw):
    flat = tuple(v for pair in reversed(pw) for v in pair)
    return torch.nn.functional.pad(x, flat)

kernel_name = 'standalone__deformable_dcnv1__vision'

def setup_inputs():

    _w = (lambda a: (lambda t: t.to(torch.bfloat16) if t.is_floating_point() else t)(torch.as_tensor(a)))
    H = W = 224
    C = 96
    K = 3
    return {
        "x": _w((lambda *s: torch.randn(*s, dtype=torch.bfloat16) * 0.05)(1, H, W, C)),
        "offset": _w((lambda *s: torch.randn(*s, dtype=torch.bfloat16) * 0.05)(1, H, W, 2 * K * K) * 0.5),
        "w": _w((lambda *s: torch.randn(*s, dtype=torch.bfloat16) * 0.05)(K, K, C, C) * (K * K * C) ** -0.5),
    }

def reference(x, offset, w):
    B, H, W, C = x.shape
    K = 3
    hh = (lambda x, dt: x.to(dt))(torch.arange(H), x.dtype).reshape(1, H, 1)
    ww = (lambda x, dt: x.to(dt))(torch.arange(W), x.dtype).reshape(1, 1, W)
    xf = x.reshape(B, H * W, C)
    def _gather(yi, xi):
        lin = (yi * W + xi).reshape(B, H * W)
        idx = (lambda x, n, axis: torch.repeat_interleave(x, n, dim=axis))(lin[..., None], C, axis=-1)
        return (lambda x, i, axis: torch.take_along_dim(x, i, dim=axis))(xf, idx, axis=1).reshape(B, H, W, C)
    taps = []
    for ki in range(K):
        for kj in range(K):
            t = ki * K + kj
            dy = offset[..., 2 * t]
            dx = offset[..., 2 * t + 1]
            py = torch.clip(hh + (ki - 0.5 * (K - 1)) + dy, 0.0, H - 1.0)
            px = torch.clip(ww + (kj - 0.5 * (K - 1)) + dx, 0.0, W - 1.0)
            y0 = torch.floor(py)
            x0 = torch.floor(px)
            y1 = torch.clip(y0 + 1.0, 0.0, H - 1.0)
            x1 = torch.clip(x0 + 1.0, 0.0, W - 1.0)
            wy = (py - y0)[..., None]
            wx = (px - x0)[..., None]
            y0i = (lambda x, dt: x.to(dt))(y0, torch.int64)
            y1i = (lambda x, dt: x.to(dt))(y1, torch.int64)
            x0i = (lambda x, dt: x.to(dt))(x0, torch.int64)
            x1i = (lambda x, dt: x.to(dt))(x1, torch.int64)
            v = (1 - wy) * (1 - wx) * _gather(y0i, x0i) + (1 - wy) * wx * _gather(y0i, x1i) + wy * (1 - wx) * _gather(y1i, x0i) + wy * wx * _gather(y1i, x1i)
            taps.append(v)
    samp = torch.stack(taps, 3)
    return torch.einsum("bhwkc,kco->bhwo", samp, w.reshape(K * K, C, C))
```

```python
import sys, os
MAIN = open("v11_cpf.s").read() if os.path.exists("v11_cpf.s") else None
KN = "standalone__deformable_dcnv1__vision_kernel"

def probe_src(body, K, lds=163840, who=None):
    sel = ""
    if who is not None:
        sel = f"    s_cmp_lg_u32 s2, {who}\n    s_cbranch_scc1 P_end\n"
    return f""".p2align 8
.globl probe_kernel
.type probe_kernel,@function
probe_kernel:
    s_memrealtime s[40:41]
    s_memtime s[46:47]
    s_cmp_ge_u32 s2, 256
    s_cbranch_scc1 P_end
    s_load_dwordx8 s[48:55], s[0:1], 0
    s_load_dwordx4 s[56:59], s[0:1], 32
    v_lshrrev_b32 v1, 6, v0
    v_and_b32 v2, 63, v0
    v_readfirstlane_b32 s3, v1
    s_waitcnt lgkmcnt(0)
    s_mov_b32 s8, s48
    s_and_b32 s9, s49, 0xffff
    s_mov_b32 s10, 9633792
    s_mov_b32 s11, 0x20000
    s_mov_b32 s12, s50
    s_and_b32 s13, s51, 0xffff
    s_mov_b32 s14, 1806336
    s_mov_b32 s15, 0x20000
    s_mov_b32 s16, s52
    s_and_b32 s17, s53, 0xffff
    s_mov_b32 s18, 165888
    s_mov_b32 s19, 0x20000
    s_mov_b32 s20, s54
    s_and_b32 s21, s55, 0xffff
    s_mov_b32 s22, 9633792
    s_mov_b32 s23, 0x20000
    s_mov_b32 s24, s58
    s_and_b32 s25, s59, 0xffff
    s_mov_b32 s26, 0x1000000
    s_mov_b32 s27, 0x20000
{body}
    s_memrealtime s[42:43]
    s_memtime s[60:61]
    s_waitcnt lgkmcnt(0)
    s_sub_u32 s44, s42, s40
    s_sub_u32 s60, s60, s46
    s_lshl_b32 s61, s2, 2
    s_add_u32 s61, s61, s3
    s_lshl_b32 s61, s61, 3
    v_mov_b32 v1, s61
    v_mov_b32 v2, s44
    v_mov_b32 v3, s60
    s_mov_b64 exec, 1
    buffer_store_dwordx2 v[2:3], v1, s[24:27], 0 offen
{sel}    s_min_u32 s44, s44, 1500
    s_mul_i32 s44, s44, {K}
    s_add_u32 s44, s44, 1500
P_spin:
    s_memrealtime s[42:43]
    s_waitcnt lgkmcnt(0)
    s_sub_u32 s42, s42, s40
    s_cmp_lt_u32 s42, s44
    s_cbranch_scc1 P_spin
P_end:
    s_endpgm
"""
KD = """.amdhsa_kernel probe_kernel
  .amdhsa_next_free_vgpr 512
  .amdhsa_next_free_sgpr 102
  .amdhsa_accum_offset 256
  .amdhsa_group_segment_fixed_size 0
  .amdhsa_kernarg_size 48
  .amdhsa_user_sgpr_count 2
  .amdhsa_user_sgpr_kernarg_segment_ptr 1
  .amdhsa_system_sgpr_workgroup_id_x 1
.end_amdhsa_kernel
"""
def build(body, K, who=None):
    s = MAIN
    old = [l for l in s.split("\n") if "@launch" in l][0]
    new = f"; @launch kernel=probe_kernel grid=(256,1,1) block=(256,1,1) lds=163840\n; @launch kernel={KN} grid=(256,1,1) block=(256,1,1) lds=162304"
    s = s.replace(old, new)
    i = s.index('.section .rodata,"a"')
    s = s[:i] + probe_src(body, K, who=who) + s[i:] + ".p2align 6\n" + KD
    return s

def dma(n, srd, wgstride, flags, wait=0, rot=False):
    L = [f"s_mul_i32 s30, s2, {wgstride}", "v_lshlrev_b32 v4, 4, v0", "v_add_u32 v4, s30, v4", "s_lshl_b32 s31, s3, 10"]
    if rot:
        L += ["s_lshr_b32 s33, s2, 3", f"s_mul_i32 s33, s33, {4096}"]
    for i in range(n):
        L.append(f"s_add_u32 m0, s31, {(i % 39) * 4096}")
        if rot:
            L.append(f"s_add_u32 s32, s33, {i * 4096}")
            L.append(f"s_cmp_ge_u32 s32, {n * 4096}")
            L.append(f"s_cselect_b32 s34, {n * 4096}, 0")
            L.append(f"s_sub_u32 s32, s32, s34")
        else:
            L.append(f"s_mov_b32 s32, {i * 4096}")
        L.append(f"buffer_load_dwordx4 v4, s[{srd}:{srd+3}], s32 offen {flags} lds")
    L.append(f"s_waitcnt vmcnt({wait})")
    return "\n".join("    " + l for l in L)

BODIES = {
    "karg": "",
    "x9nt": dma(9, 8, 37632, "nt"),
    "x9pl": dma(9, 8, 37632, ""),
    "x1nt": dma(1, 8, 37632, "nt"),
    "x4nt": dma(4, 8, 37632, "nt"),
    "w40": dma(40, 16, 0, ""),
    "w40rot": dma(40, 16, 0, "", rot=True),
    "w4": dma(4, 16, 0, ""),
    "code16": "\n".join(f"    v_add3_u32 v{4+(i%16)}, v2, v3, v2" for i in range(2048)),
}
if __name__ == "__main__":
    for spec in sys.argv[1:]:
        name, K = spec.split(":")[:2]
        open(f"p_{name}_{K}.s", "w").write(build(BODIES[name], int(K)))
        print(f"cdna_kernels/exp/p_{name}_{K}.s")
```

```python
import sys, os
MAIN = open("v11_cpf.s").read() if os.path.exists("v11_cpf.s") else None
KN = "standalone__deformable_dcnv1__vision_kernel"

def probe_src(body, K, lds=163840, who=None):
    pre, post = "", ""
    if isinstance(body, tuple):
        pre, body, post = body
    sel = ""
    if who is not None:
        sel = f"    s_cmp_lg_u32 s2, {who}\n    s_cbranch_scc1 P_end\n"
    return f""".p2align 8
.globl probe_kernel
.type probe_kernel,@function
probe_kernel:
    s_memrealtime s[40:41]
    s_memtime s[46:47]
    s_cmp_ge_u32 s2, 256
    s_cbranch_scc1 P_end
    s_load_dwordx8 s[48:55], s[0:1], 0
    s_load_dwordx4 s[56:59], s[0:1], 32
{pre}
    v_lshrrev_b32 v1, 6, v0
    v_and_b32 v2, 63, v0
    v_readfirstlane_b32 s3, v1
    s_waitcnt lgkmcnt(0)
    s_mov_b32 s8, s48
    s_and_b32 s9, s49, 0xffff
    s_mov_b32 s10, 9633792
    s_mov_b32 s11, 0x20000
    s_mov_b32 s12, s50
    s_and_b32 s13, s51, 0xffff
    s_mov_b32 s14, 1806336
    s_mov_b32 s15, 0x20000
    s_mov_b32 s16, s52
    s_and_b32 s17, s53, 0xffff
    s_mov_b32 s18, 165888
    s_mov_b32 s19, 0x20000
    s_mov_b32 s20, s54
    s_and_b32 s21, s55, 0xffff
    s_mov_b32 s22, 9633792
    s_mov_b32 s23, 0x20000
    s_mov_b32 s24, s58
    s_and_b32 s25, s59, 0xffff
    s_mov_b32 s26, 0x1000000
    s_mov_b32 s27, 0x20000
{body}
    s_memrealtime s[42:43]
    s_memtime s[60:61]
    s_waitcnt lgkmcnt(0)
    s_sub_u32 s44, s42, s40
    s_sub_u32 s60, s60, s46
    s_lshl_b32 s61, s2, 2
    s_add_u32 s61, s61, s3
    s_lshl_b32 s61, s61, 3
    v_mov_b32 v1, s61
    v_mov_b32 v2, s44
    v_mov_b32 v3, s60
    s_mov_b64 exec, 1
    buffer_store_dwordx2 v[2:3], v1, s[24:27], 0 offen
{sel}    s_min_u32 s44, s44, 1500
    s_mul_i32 s44, s44, {K}
    s_add_u32 s44, s44, 1500
P_spin:
    s_memrealtime s[42:43]
    s_waitcnt lgkmcnt(0)
    s_sub_u32 s42, s42, s40
    s_cmp_lt_u32 s42, s44
    s_cbranch_scc1 P_spin
P_end:
    s_endpgm
{post}
"""
KD = """.amdhsa_kernel probe_kernel
  .amdhsa_next_free_vgpr 512
  .amdhsa_next_free_sgpr 102
  .amdhsa_accum_offset 256
  .amdhsa_group_segment_fixed_size 0
  .amdhsa_kernarg_size 48
  .amdhsa_user_sgpr_count 2
  .amdhsa_user_sgpr_kernarg_segment_ptr 1
  .amdhsa_system_sgpr_workgroup_id_x 1
.end_amdhsa_kernel
"""
def build(body, K, who=None):
    s = MAIN
    old = [l for l in s.split("\n") if "@launch" in l][0]
    new = f"; @launch kernel=probe_kernel grid=(256,1,1) block=(256,1,1) lds=163840\n; @launch kernel={KN} grid=(256,1,1) block=(256,1,1) lds=162304"
    s = s.replace(old, new)
    i = s.index('.section .rodata,"a"')
    s = s[:i] + probe_src(body, K, who=who) + s[i:] + ".p2align 6\n" + KD
    return s

def dma(n, srd, wgstride, flags, wait=0, rot=False):
    L = [f"s_mul_i32 s30, s2, {wgstride}", "v_lshlrev_b32 v4, 4, v0", "v_add_u32 v4, s30, v4", "s_lshl_b32 s31, s3, 10"]
    if rot:
        L += ["s_lshr_b32 s33, s2, 3", f"s_mul_i32 s33, s33, {4096}"]
    for i in range(n):
        L.append(f"s_add_u32 m0, s31, {(i % 39) * 4096}")
        if rot:
            L.append(f"s_add_u32 s32, s33, {i * 4096}")
            L.append(f"s_cmp_ge_u32 s32, {n * 4096}")
            L.append(f"s_cselect_b32 s34, {n * 4096}, 0")
            L.append(f"s_sub_u32 s32, s32, s34")
        else:
            L.append(f"s_mov_b32 s32, {i * 4096}")
        L.append(f"buffer_load_dwordx4 v4, s[{srd}:{srd+3}], s32 offen {flags} lds")
    L.append(f"s_waitcnt vmcnt({wait})")
    return "\n".join("    " + l for l in L)


def slices(n, flags, s0=0, nsl=1):
    L = ["s_mul_i32 s30, s2, 37632", "v_lshrrev_b32 v4, 2, v0", "v_mul_u32_u24 v4, 192, v4", "v_and_b32 v5, 3, v0",
         "v_lshl_add_u32 v4, v5, 4, v4", "v_add_u32 v4, s30, v4", "s_lshl_b32 s31, s3, 10"]
    k = 0
    for sl in range(nsl):
        for i in range(n):
            L.append(f"s_add_u32 m0, s31, {k * 4096}")
            L.append(f"s_mov_b32 s32, {i * 64 * 192 + 64 * (s0 + sl)}")
            L.append(f"buffer_load_dwordx4 v4, s[8:11], s32 offen {flags} lds")
            k += 1
    L.append(f"s_waitcnt vmcnt(0)")
    return "\n".join("    " + l for l in L)
def stores(n, flags):
    L = ["s_mul_i32 s30, s2, 37632", "v_lshlrev_b32 v4, 4, v0", "v_add_u32 v4, s30, v4"]
    for i in range(n):
        L.append(f"s_mov_b32 s32, {i * 4096}")
        L.append(f"buffer_store_dwordx4 v[8:11], v4, s[20:23], s32 offen {flags}")
    L.append(f"s_waitcnt vmcnt(0)")
    return "\n".join("    " + l for l in L)

def tab(pad):
    pre = """    s_getpc_b64 s[70:71]
P_pc:
    s_lshl_b32 s72, s2, 3
    s_add_u32 s72, s72, P_tab-P_pc
    s_add_u32 s70, s70, s72
    s_addc_u32 s71, s71, 0
    s_load_dwordx2 s[74:75], s[70:71], 0"""
    post = f".p2align 6\n" + "\n".join("    s_endpgm" for _ in range(pad // 4)) + "\n.type P_tab,@object\nP_tab:\n" + "\n".join("    .long 1, 2" for _ in range(256)) + "\n.size P_tab, .-P_tab\n"
    return (pre, "", post)

ROWB = 224 * 192
def start(order, upto, pf=True, xf=""):
    L = []
    L += ["s_and_b32 s30, s2, 7", "s_lshl_b32 s30, s30, 5", "s_lshr_b32 s31, s2, 3", "s_add_u32 s30, s30, s31",
          "s_mul_i32 s31, s30, 2731", "s_lshr_b32 s31, s31, 16",
          "s_mul_i32 s32, s31, 24", "s_sub_u32 s32, s30, s32",
          f"s_mul_i32 s32, s32, {7 * ROWB}", f"s_mul_i32 s31, s31, {16 * 192}",
          "s_add_u32 s30, s31, s32", f"s_add_u32 s30, s30, {47 * ROWB + 47 * 192}",
          "v_lshlrev_b32 v4, 4, v2", "s_mul_i32 s33, s3, 864", "v_add_u32 v5, s33, v4", "s_mul_i32 s34, s3, 4608", "v_add_u32 v6, s34, v4"]
    cnt = []
    n = 0
    if pf:
        L += ["s_lshr_b32 s35, s2, 3", "s_mul_i32 s35, s35, 5184", "s_mul_i32 s36, s3, 1296", "s_add_u32 s35, s35, s36", "v_lshlrev_b32 v7, 7, v2", "s_mov_b64 exec, 0x7ff",
              "buffer_load_dword v8, v7, s[16:19], s35 offen", "s_mov_b64 exec, -1"]
    for it in order.split():
        k = int(it[1:])
        if it[0] == "L":
            L += [f"s_add_u32 m0, s33, {k * 3456}", f"s_add_u32 s35, s30, {k * ROWB}", "s_mov_b32 exec_hi, 0x3fffff",
                  f"buffer_load_dwordx4 v5, s[8:11], s35 offen {xf} lds", "s_mov_b64 exec, -1"]
            n += 1
        else:
            L += [f"s_add_u32 m0, s34, {65536 + (k % 4) * 18432}", f"s_mov_b32 s35, {k * 18432}"]
            for m in range(4):
                L.append(f"buffer_load_dwordx4 v6, s[16:19], s35 offen offset:{1024*m} lds")
            L += ["s_add_u32 m0, m0, 4096", "s_add_u32 s35, s35, 4096", "s_mov_b32 exec_hi, 0", f"buffer_load_dwordx4 v6, s[16:19], s35 offen lds", "s_mov_b64 exec, -1"]
            n += 5
        cnt.append(n)
    L += [f"s_waitcnt vmcnt({n - cnt[upto]})", "s_barrier"]
    return "\n".join("    " + l for l in L)

O1 = "L0 L3 W0 L1 L4 L2 L5 W1 L6 W2 L7"
O2 = "L0 L1 L2 L3 L4 L5 W0 W1 L6 W2 L7"
BODIES = {
    'tabn': tab(0), 'tabf': tab(20480),
    'o1a': start(O1, 2), 'o1b': start(O1, 4), 'o1c': start(O1, 6), 'o1d': start(O1, 7), 'o1e': start(O1, 9),
    'o2a': start(O2, 6), 'o2b': start(O2, 9), 'o1cn': start(O1, 6, pf=False), 'o1en': start(O1, 9, pf=False),
    'sl0': slices(3, ''), 'sl1': slices(3, '', 1), 'sl012': slices(3, '', 0, 3), 'x3pl': dma(3, 8, 37632, ''), 'x6pl': dma(6, 8, 37632, ''),
    'st1sc': stores(1, 'sc1'), 'st1pl': stores(1, ''), 'st9sc': stores(9, 'sc1'), 'st9pl': stores(9, ''), 'st9nt': stores(9, 'nt'),
    "karg": "",
    "x9nt": dma(9, 8, 37632, "nt"),
    "x9pl": dma(9, 8, 37632, ""),
    "x1nt": dma(1, 8, 37632, "nt"),
    "x4nt": dma(4, 8, 37632, "nt"),
    "w40": dma(40, 16, 0, ""),
    "w40rot": dma(40, 16, 0, "", rot=True),
    "w4": dma(4, 16, 0, ""),
    "code16": "\n".join(f"    v_add3_u32 v{4+(i%16)}, v2, v3, v2" for i in range(2048)),
}
if __name__ == "__main__":
    for spec in sys.argv[1:]:
        name, K = spec.split(":")[:2]
        open(f"p_{name}_{K}.s", "w").write(build(BODIES[name], int(K)))
        print(f"cdna_kernels/exp/p_{name}_{K}.s")
```

```python
class Asm:
    def __init__(self):
        self.lines = []
        self.uid = 0
    def __call__(self, s):
        for ln in s.strip("\n").split("\n"):
            self.lines.append("    " + ln.strip() if ln.strip() and not ln.strip().endswith(":") else ln.strip())
    def label(self, name):
        self.lines.append(name + ":")
    def comment(self, s):
        self.lines.append("    ; " + s)
    def newlabel(self, base):
        self.uid += 1
        return f"{base}_{self.uid}"
    def text(self):
        return "\n".join(self.lines) + "\n"

def vr(base, n=1):
    return f"v{base}" if n == 1 else f"v[{base}:{base+n-1}]"
def ar(base, n=1):
    return f"a{base}" if n == 1 else f"a[{base}:{base+n-1}]"
def sr(base, n=1):
    return f"s{base}" if n == 1 else f"s[{base}:{base+n-1}]"
```

```python
import numpy as np

H = W = 224
PIX = 192
ROWB = W * PIX
OFFROW = W * 36
XBYTES = H * ROWB
OFFBYTES = H * W * 36
WBYTES = 9 * 96 * 96 * 2
LINE = 18 * PIX
LINEB = 50 * PIX
RING = 61440
XA = RING
XEND = XA + 8 * LINE + 6 * LINEB
TAB = XEND
DESC = TAB + 8 * 768
LIST = DESC + 4096
FLAG = LIST + 1024
LDS_BYTES = FLAG + 64
assert LDS_BYTES <= 163840 and LIST % 64 == 0
OOB = 0x7f000000
CUW = 128
NJOB = 5

FIELDS = ["A0", "Jmax", "Off0", "Off1", "Off2", "Off3", "MinStr", "LaneLim", "Aabs", "Tr", "Aorg", "NL", "SA", "BW", "Wd", "P0",
          "TabB", "GS", "JmaxB", "OffA", "NA36", "Thr", "Bmask", "NR", "PixA", "L7", "Extra"]

def bf16(v):
    return int(np.array([v], np.float32).view(np.uint32)[0] >> 16)

def windows():
    cols = [48 + 16 * k for k in range(11)]
    kinds = [2, 1, 1, 0, 0, 0, 0, 0, 0, 0, 0]
    six = [("L", r) for r in range(48, 224, 2)] + [("T", c) for c in range(16, 224, 2)]
    m2 = [("M", r) for r in range(16, 48, 2)]
    c1 = [("C", r) for r in range(16)]
    out = []
    for c0, kd in zip(cols, kinds):
        hs = {0: [6] * 20 + [14] * 4, 1: [6] * 16 + [10] * 8, 2: [11] * 16}[kd]
        r = 48
        for h in hs:
            b = {6: six, 10: m2, 11: c1}[h].pop(0) if h != 14 else None
            out.append((c0, r, h, b)); r += h
        assert r == 224
    assert not six and not m2 and not c1 and len(out) == 256
    return out

def entry(c0, row0, nA, B):
    f = dict.fromkeys(FIELDS, 0)
    aline = lambda l: (min(row0 - 1 + l, 223) * W + c0 - 1) * PIX
    f["A0"] = aline(0); f["L7"] = aline(7)
    f["Jmax"] = 16 if c0 == 208 else 17
    f["JmaxB"] = 17
    f["OffA"] = (row0 * W + c0) * 36
    f["NA36"] = 36 * nA
    ty = 0.125 if row0 - 1 <= 64 else 0.25
    tx = 0.125 if c0 - 1 <= 64 else 0.25
    f["Thr"] = bf16(ty) | bf16(tx) << 16
    f["NR"] = 4 if nA == 14 else 3
    f["PixA"] = row0 * W + c0
    f["GS"] = PIX
    f["MinStr"] = 36
    for p in range(4): f[f"Off{p}"] = OOB
    BW = XA + (nA + 2) * LINE
    f["BW"] = BW
    jobs = [(XA + l * LINE, aline(l)) for l in range(8, nA + 2)]
    rec = {}
    pix = []
    for r in range(nA):
        pix.append((row0 + r) * W + c0 + np.arange(16))
        if r >= 6:
            rec[((r - 6) & 1, (r - 6) >> 1)] = (XA + (r + 1) * LINE, LINE | LINE << 16, 1, (row0 + r) * W + c0)
    if B is None:
        f["JmaxB"] = f["Jmax"]
    else:
        kind, a = B
        assert nA == 6 or c0 != 208
        f["Bmask"] = 0xfff & ~((1 << nA) - 1)
        tr = kind == "T"
        mg = 1 if (kind == "L" or (tr and a >= 34)) else 2
        nb = 48 if kind in "LT" else 16
        lines = [a] if kind == "C" else [a, a + 1]
        aorg = max(a - mg, 0)
        nL = len(lines) + 2 * mg
        SA = LINEB if nb == 48 else LINE
        u0 = 0 if nb == 48 else 2
        l0 = a - 1 if kind == "C" else a
        gp = (lambda maj, mn: mn * W + maj) if tr else (lambda maj, mn: maj * W + mn)
        f.update(Tr=int(tr), Aorg=aorg, NL=nL, SA=SA, Wd=nb + 2, P0=bf16(a) | bf16(1) << 16, TabB=TAB + u0 * 768,
                 Aabs=(l0 - 1) & 0xffffffff, LaneLim=54 if nb == 48 else 36, MinStr=OFFROW if tr else 36, GS=ROWB if tr else PIX)
        for p in range(4):
            maj, hp = l0 + (p & 1), p >> 1
            if maj in lines and 24 * hp < nb:
                f[f"Off{p}"] = gp(maj, 24 * hp) * 36
        for i in range(nb // 16):
            for l in range(nL):
                jobs.append((BW + l * SA + 3072 * i, gp(min(aorg + l, 223), 16 * i) * PIX))
        for maj in lines:
            for i in range(nb // 16):
                key = (maj - l0, u0 + i)
                assert key not in rec
                rec[key] = (BW + (maj - aorg) * SA, (SA if maj > 0 else 0) | SA << 16, 16 * i, gp(maj, 16 * i))
                pix.append(np.array([gp(maj, 16 * i + n) for n in range(16)]))
        assert BW + nL * SA <= XEND
    for ph in range(2):
        rec.setdefault((ph, 3), rec[(ph, 2)])
    assert len(rec) == 8 and len(jobs) <= 4 * NJOB
    f["Extra"] = int(len(jobs) > 12)
    spare = (XEND - LINE, OOB) if len(jobs) <= 12 else jobs[-1]
    assert len(jobs) in (12, 18) or max(j[0] for j in jobs) + LINE <= XEND - LINE
    words = [f[k] for k in FIELDS] + [0] * (32 - len(FIELDS))
    for w in range(4):
        part = []
        for k in range(NJOB):
            part += list(jobs[4 * k + w] if 4 * k + w < len(jobs) else spare)
        part += [rec[(w >> 1, u)][3] * PIX for u in range(4)]
        part += [(f["PixA"] + 3 * (w >> 1) * W) * PIX, 0]
        words += part
    for ph in range(2):
        for u in range(4):
            words += list(rec[(ph, u)])
    assert len(words) == CUW
    return words, np.concatenate(pix)

def table():
    win = windows()
    seen = np.zeros(H * W, int)
    t = []
    for i in range(256):
        words, pix = entry(*win[(i % 8) * 32 + i // 8])
        seen[pix] += 1
        t.append(words)
    assert (seen == 1).all()
    return t

if __name__ == "__main__":
    t = table()
    print("LDS", LDS_BYTES, "XEND", XEND)
    print(t[0][:32])
```

```python
class Item:
    def __init__(self, name, txt, kind, target, deadline=10**9, pre=(), cov=(), mf=(), weight=1):
        self.name, self.kind = name, kind
        self.txt = [txt] if isinstance(txt, str) else list(txt)
        self.target, self.deadline = target, deadline
        self.pre = list(pre)
        self.cov = list(cov)
        self.mf = list(mf)
        self.weight = weight
        self.pos = None; self.gap = None; self.lidx = None

class Sched:
    def __init__(self, e, vmq, lat=6, cap=2):
        self.e = e
        self.groups = []
        self.streams = []
        self.bounds = {}
        self.vmq = vmq
        self.lds = []
        self.covered = -1
        self.pos = 0
        self.mfpos = {}
        self.lat, self.cap = lat, cap
        self.over = 0
        self.nwait = 0
    def stream(self):
        s = []
        self.streams.append(s)
        return s
    def emit(self, t):
        self.e(t)
        if not t.endswith(":"):
            self.pos += 1
    def ready(self, it):
        for p, d in it.pre:
            if p.pos is None or self.pos - p.pos - 1 < d: return False
        for c in it.cov:
            if c.lidx is None or c.lidx > self.covered: return False
        for x, d in it.mf:
            if x not in self.mfpos or self.pos - self.mfpos[x] - 1 < d: return False
        return True
    def issue(self, it, gap):
        for t in it.txt: self.emit(t)
        it.pos = self.pos - 1; it.gap = gap
        if it.kind == "lds":
            it.lidx = len(self.lds); self.lds.append(it)
        elif it.kind == "vm":
            self.vmq.append(it.name)
    def fill(self, gap, slots):
        used = 0
        while True:
            cand = [s for s in self.streams if s and s[0].target <= gap and self.ready(s[0])]
            if not cand: break
            forced = [s for s in cand if s[0].deadline <= gap]
            if forced:
                s = forced[0]
            else:
                cand = [s for s in cand if used + s[0].weight <= slots]
                if not cand: break
                s = min(cand, key=lambda q: q[0].deadline)
            it = s.pop(0)
            self.issue(it, gap)
            used += it.weight
        for s in self.streams:
            assert not s or s[0].deadline > gap, f"item {s[0].name} missed its deadline {s[0].deadline} at gap {gap}"
        self.over += max(0, used - slots)
    def need(self, k):
        b = self.bounds.get(k, {})
        items = list(self.groups[k][1]) + list(b.get("cov", []))
        return items, b
    def boundary_cost(self, k):
        items, b = self.need(k)
        n = sum(1 for t in b.get("txt", []) if not t.endswith(":")) + int(b.get("bar", False))
        if b.get("vm") or any(c.lidx is None or c.lidx > self.covered for c in items): n += 1
        return n
    def boundary(self, k, gap):
        items, b = self.need(k)
        for t in b.get("txt", []): self.emit(t)
        w = []
        if b.get("vm"):
            idx = max(max(i for i, n in enumerate(self.vmq) if n == name) for name in b["vm"])
            n = len(self.vmq) - 1 - idx
            assert n < 64
            w.append(f"vmcnt({n})")
        for c in items:
            assert c.lidx is not None, f"group {k} needs {c.name}, which was not issued"
        req = max([c.lidx for c in items], default=-1)
        if req > self.covered or w:
            old = max([c.lidx for c in self.lds if c.gap <= gap - self.lat], default=-1)
            cov = max(req, old, self.covered, len(self.lds) - 16)
            if cov > self.covered:
                w.append(f"lgkmcnt({len(self.lds) - 1 - cov})")
                self.covered = cov
        if w:
            self.emit("s_waitcnt " + " ".join(w)); self.nwait += 1
        if b.get("bar"): self.emit("s_barrier")
        for f in b.get("post", []): f()
    def run(self):
        self.fill(-1, 10**6)
        self.boundary(0, -1)
        for k, (mf, _) in enumerate(self.groups):
            for j, t in enumerate(mf):
                gap = 3 * k + j
                self.emit(t); self.mfpos[gap] = self.pos - 1
                last = j == 2 and k + 1 < len(self.groups)
                c = self.boundary_cost(k + 1) if last else 0
                self.fill(gap, max(0, self.cap - c))
                self.over += max(0, c - self.cap)
                if last: self.boundary(k + 1, gap)
        for s in self.streams:
            assert not s, f"unscheduled {s[0].name}"
```

```python
import sys, os
from asmlib import Asm, vr, ar, sr
from sched import Item, Sched
from geo14 import *
import geo14

NWG = 256
KNAME = "standalone__deformable_dcnv1__vision_kernel"
env = os.environ.get
DIAG = int(env("DIAG", "0"))
XF = env("XF", "")
OF = env("OF", "")
SF = env("SF", "sc1")
ORDER = env("ORDER", "P O R0 L0 L3 L1 L4 L2 L5 R1|L6 L7|R2 R3")
HEAD = env("HEAD", "a")
LEAD = int(env("LEAD", "12"))
LAT = int(env("LAT", "6"))
JOBAT = [int(x) for x in env("JOBAT", "1,4,7").split(",")]
CPFS = int(env("CPFS", "6"))

SX, SO, SWT, SOUT = 8, 12, 16, 20
sW, sTab = 3, 6
F = {k: 32 + i for i, k in enumerate(FIELDS)}
sJob, sOutL, sOutA = 64, 74, 78
sWm, sXm, sP, sT0, sT1 = 24, 25, 26, 30, 31
sT2, sT3, sSelA, sSelB, sClip, sFFFF = 59, 60, 61, 62, 63, 79
sM = 80
sCnt, sND2, sBase, sNeg = 96, 97, 98, 99
sOA1, sOA2 = 4, 5
sH = 2
sAbs, sFlag = 97, 98
mK = 88

vLane, vN, vG, vG16 = 1, 2, 3, 4
vWo, vXq, vXB, vWb, vB = 5, 8, 9, 13, 16
vO4A, vO2A, vO4L, vO2L = 19, 20, 21, 22
vTabR, vDA, vDW, vC1, vC2, vWA = 23, 24, 25, 26, 27, 28
vKa, vKb, vFlagA, vFlag, vDiag, vTrash = 30, 32, 34, 35, 36, 37
vA, vR = 40, 52
vAcc = 64
vFr, NFR = 112, 8
vE = (144, 150)
vKd = 156

def wfrag(t, s, j):
    i = (t * 3 + s) * 3 + j
    return ("a", 4 * i) if i < 64 else ("v", 188 + 4 * (i - 64))
def wreg(t, s, j, n=4, off=0):
    k, b = wfrag(t, s, j)
    return (ar if k == "a" else vr)(b + off, n)

def slice_order():
    if HEAD == "a":
        o = [(0, 0), (1, 0), (2, 0)] + [(c, k) for c in range(3) for k in (1, 2)]
    elif HEAD == "b":
        o = [(c, k) for k in range(3) for c in range(3)]
    elif HEAD == "k":
        return [(c, k) for k in range(3) for c in range(9)]
    else:
        o = [(c, k) for c in range(3) for k in range(3)]
    return o + [(c, k) for c in range(3, 9) for k in range(3)]
SL = slice_order()
soff = lambda sg: 55296 * SL[sg][1] + 6144 * SL[sg][0]
DIFF = [soff(2 * r + 1) - soff(2 * r) for r in range(13)]
DIFF.append(max(DIFF + [6144]))
assert soff(26) + DIFF[13] >= WBYTES
DSET = sorted(set(DIFF), key=lambda d: -max(r for r in range(14) if DIFF[r] == d))
DREG = {d: (sP + k if k < 4 else sM + k - 4) for k, d in enumerate(DSET)}
_early = [int(x[1:]) for x in " ".join(ORDER.split("|")[:2]).split() if x[0] == "R"]
assert all(r in _early for r in range(14) if DREG[DIFF[r]] >= sM)

def gen():
    e = Asm()
    nstamp = [0]
    names = []
    def stamp(name):
        if DIAG:
            k = nstamp[0]; nstamp[0] += 1
            names.append(name)
            assert k < 28
            e("s_memtime s[100:101]")
            e("s_waitcnt lgkmcnt(0)")
            e(f"v_writelane_b32 {vr(vDiag)}, s100, {k}")
    vmq = []
    def vm(name, txt):
        e(txt); vmq.append(name)
    def vmwait(*which, lgkm=False):
        idx = max(i for i, n in enumerate(vmq) if n in which)
        e(f"s_waitcnt vmcnt({len(vmq) - 1 - idx})" + (" lgkmcnt(0)" if lgkm else ""))
    s = lambda k: f"s{F[k]}"
    t0 = 160
    vD, vFa, vFb, vRg, vP, vTO, vOo = 64, 68, 70, 72, 76, 80, 81
    vRec, vT = 84, 88
    vJq, vI9, vTap, vBm, vKi, vKj, vPf = 100, 101, 102, 103, 104, 105, 106

    e(f"s_cmp_ge_u32 s2, {NWG}")
    e("s_cbranch_scc1 L_end")
    if DIAG:
        e("s_memtime s[100:101]")
    for k, srd in enumerate((SX, SO, SWT, SOUT)):
        e(f"s_load_dwordx2 s[{srd}:{srd+1}], s[0:1], {8*k}")
    e("s_getpc_b64 s[4:5]")
    e.label("L_pc")
    e("s_lshl_b32 s24, s2, 9")
    e("s_add_u32 s24, s24, L_table-L_pc")
    e(f"s_add_u32 s{sTab}, s4, s24")
    e(f"s_addc_u32 s{sTab+1}, s5, 0")
    e(f"s_load_dwordx16 s[32:47], s[{sTab}:{sTab+1}], 0")
    e(f"s_load_dwordx16 s[48:63], s[{sTab}:{sTab+1}], 64")
    e(f"v_lshrrev_b32 {vr(t0)}, 6, v0")
    e(f"v_lshlrev_b32 {vr(t0+1)}, {CPFS}, v0")
    e(f"v_readfirstlane_b32 s{sW}, {vr(t0)}")
    vm("cpf", f"global_load_dword {vr(vTrash)}, {vr(t0+1)}, s[4:5]")
    e(f"v_and_b32 {vr(vLane)}, 63, v0")
    e(f"s_lshl_b32 s24, s{sW}, 6")
    e("s_add_u32 s24, s24, 128")
    e(f"s_load_dwordx16 s[64:79], s[{sTab}:{sTab+1}], s24")
    e(f"v_and_b32 {vr(vG16)}, 48, v0")
    e(f"v_lshrrev_b32 {vr(t0)}, 7, v0")
    e(f"v_lshl_add_u32 {vr(t0)}, {vr(t0)}, 6, {vr(vG16)}")
    vm("rec", f"global_load_dwordx3 {vr(vRec,3)}, {vr(t0)}, s[{sTab}:{sTab+1}] offset:384")
    e(f"v_lshlrev_b32 {vr(vWo)}, 4, {vr(vLane)}")
    e(f"v_and_b32 {vr(t0)}, 32, {vr(vLane)}")
    e(f"v_xor_b32 {vr(vWo+2)}, 32, {vr(vWo)}")
    e(f"v_xor_b32 {vr(vWo+1)}, {vr(t0)}, {vr(vWo)}")
    e(f"s_lshr_b32 s{sT0}, s2, 3")
    e(f"s_lshl2_add_u32 s{sT0}, s{sT0}, s{sW}")
    e(f"s_mul_i32 s{sT0}, s{sT0}, 1296")
    e(f"v_min_u32 {vr(vPf)}, 10, {vr(vLane)}")
    e(f"v_lshl_add_u32 {vr(vPf)}, {vr(vPf)}, 7, s{sT0}")
    e(f"s_lshl_b32 s{sT0}, s{sW}, 6")
    e(f"s_min_u32 s{sT0}, s{sT0}, 152")
    e(f"v_add_u32 {vr(t0)}, s{sT0}, {vr(vLane)}")
    e(f"v_mul_u32_u24 {vr(vJq)}, 5462, {vr(t0)}")
    e(f"s_lshl4_add_u32 s{sXm}, s{sT0}, {XA}")
    e(f"v_lshrrev_b32 {vr(vJq)}, 16, {vr(vJq)}")
    e(f"v_lshlrev_b32 {vr(t0)}, 4, {vr(t0)}")
    e(f"v_and_b32 {vr(t0+1)}, 4, {vr(vJq)}")
    e(f"v_lshlrev_b32 {vr(t0+1)}, 3, {vr(t0+1)}")
    e(f"v_xor_b32 {vr(vXq)}, {vr(t0)}, {vr(t0+1)}")
    e(f"v_mul_u32_u24 {vr(vI9)}, 7282, {vr(vLane)}")
    e(f"v_lshrrev_b32 {vr(vI9)}, 16, {vr(vI9)}")
    e(f"v_mad_i32_i24 {vr(vTap)}, {vr(vI9)}, -9, {vr(vLane)}")
    e(f"v_lshl_add_u32 {vr(vBm)}, {vr(vI9)}, 2, s{sW}")
    e(f"v_lshlrev_b32 {vr(vOo)}, 2, {vr(vTap)}")
    e(f"v_mov_b32 {vr(t0+2)}, {OOB:#x}")
    e(f"s_mul_i32 s{sWm}, s{sW}, 3072")
    e(f"s_and_b32 s{sH}, s{sW}, 1")
    e(f"s_lshr_b32 s{sT1}, s{sW}, 1")
    e(f"s_mul_i32 s{sT0}, s{sH}, 3072")
    for d, k in DREG.items():
        e(f"s_mul_i32 s{k}, s{sT1}, {d}")
        e(f"s_add_u32 s{k}, s{k}, s{sT0}")
    for srd, nb in ((SX, XBYTES), (SO, OFFBYTES), (SWT, WBYTES), (SOUT, XBYTES)):
        e(f"s_mov_b32 s{srd+2}, {nb}")
        e(f"s_mov_b32 s{srd+3}, 0x20000")
    e("s_waitcnt lgkmcnt(0)")
    if DIAG:
        e(f"v_writelane_b32 {vr(vDiag)}, s100, 28")
    stamp("karg")
    e(f"v_cmp_gt_u32 vcc, {s('LaneLim')}, {vr(vLane)}")
    e(f"v_mad_u32_u24 {vr(vOo)}, {vr(vBm)}, {s('MinStr')}, {vr(vOo)}")
    e(f"v_min_u32 {vr(t0)}, {s('Jmax')}, {vr(vJq)}")
    e(f"v_cndmask_b32 {vr(vOo)}, {vr(t0+2)}, {vr(vOo)}, vcc")
    e(f"v_sub_u32 {vr(t0)}, {vr(vJq)}, {vr(t0)}")
    e(f"v_mul_u32_u24 {vr(t0)}, {PIX}, {vr(t0)}")
    e(f"v_sub_u32 {vr(vXq)}, {vr(vXq)}, {vr(t0)}")

    def wsetup(r):
        return [f"s_add_u32 m0, s{sWm}, {12288 * (r % 5)}", f"s_add_u32 s{sT0}, s{DREG[DIFF[r]]}, {soff(2*r)}"]
    def wdma(m):
        return f"buffer_load_dwordx4 {vr(vWo+m)}, s[{SWT}:{SWT+3}], s{sT0} offen{f' offset:{1024*m}' if m else ''} lds"
    def loads(part):
        for it in part.split():
            if it == "P":
                vm("P", f"buffer_load_dword {vr(vTrash)}, {vr(vPf)}, s[{SWT}:{SWT+3}], 0 offen")
            elif it == "O":
                for p in range(4):
                    vm("O", f"buffer_load_dword {vr(vD+p)}, {vr(vOo)}, s[{SO}:{SO+3}], {s(f'Off{p}')} offen {OF}")
            elif it[0] == "R":
                for ln in wsetup(int(it[1:])): e(ln)
                for m in range(3): vm(it, wdma(m))
            else:
                k = int(it[1:])
                e(f"s_add_u32 m0, s{sXm}, {k * LINE}")
                e(f"s_add_u32 s{sT0}, {s('A0')}, {k * ROWB}" if k < 7 else f"s_mov_b32 s{sT0}, {s('L7')}")
                vm(it, f"buffer_load_dwordx4 {vr(vXq)}, s[{SX}:{SX+3}], s{sT0} offen {XF} lds")
    parts = ORDER.split("|")
    loads(parts[0])
    stamp("issued")

    sPh = sT1
    e(f"v_and_b32 {vr(vN)}, 15, v0")
    e(f"v_lshrrev_b32 {vr(vG)}, 4, {vr(vLane)}")
    e(f"v_mul_u32_u24 {vr(vKi)}, 11, {vr(vTap)}")
    e(f"v_lshrrev_b32 {vr(vKi)}, 5, {vr(vKi)}")
    e(f"v_mad_i32_i24 {vr(vKj)}, {vr(vKi)}, -3, {vr(vTap)}")
    e(f"s_mul_i32 s{sT0}, s{sPh}, 3072")
    e(f"s_add_u32 s{sT0}, s{sT0}, {TAB}")
    e(f"v_mad_u32_u24 {vr(vTabR)}, {vr(vN)}, 48, s{sT0}")
    e(f"v_mov_b32 {vr(vFlagA)}, {FLAG}")
    e(f"v_mov_b32 {vr(t0)}, 0")
    e(f"ds_write_b32 {vr(vFlagA)}, {vr(t0)}")
    mm, MM, bb = t0, t0 + 3, t0 + 6
    e(f"s_movk_i32 s{sT2}, {PIX}")
    vmwait("rec")
    e(f"v_add_u32 {vr(bb+1)}, {vr(vRec+2)}, {vr(vN)}")
    e(f"v_and_b32 {vr(MM)}, 0xffff, {vr(vRec+1)}")
    e(f"v_lshrrev_b32 {vr(MM+2)}, 16, {vr(vRec+1)}")
    e(f"v_add_u32 {vr(bb)}, -1, {vr(bb+1)}")
    e(f"v_add_u32 {vr(bb+2)}, 1, {vr(bb+1)}")
    e(f"v_max_i32 {vr(bb)}, 0, {vr(bb)}")
    e(f"v_sub_u32 {vr(MM)}, {vr(vRec)}, {vr(MM)}")
    e(f"v_mov_b32 {vr(MM+1)}, {vr(vRec)}")
    e(f"v_add_u32 {vr(MM+2)}, {vr(vRec)}, {vr(MM+2)}")
    for d in range(3):
        e(f"v_and_b32 {vr(mm+d)}, 4, {vr(bb+d)}")
        e(f"v_lshlrev_b32 {vr(mm+d)}, 3, {vr(mm+d)}")
        e(f"v_mad_u32_u24 {vr(mm+d)}, {vr(bb+d)}, s{sT2}, {vr(mm+d)}")
    e(f"s_mov_b32 s{sSelA}, 0x01000c0c")
    e(f"s_mov_b32 s{sSelB}, 0x03020c0c")
    e(f"s_cmp_eq_u32 {s('Tr')}, 0")
    e("s_cbranch_scc1 L_notr")
    for d in range(3):
        e(f"v_swap_b32 {vr(mm+d)}, {vr(MM+d)}")
    e(f"v_swap_b32 {vr(vKi)}, {vr(vKj)}")
    e(f"s_mov_b32 s{sSelB}, 0x01000c0c")
    e(f"s_mov_b32 s{sSelA}, 0x03020c0c")
    e.label("L_notr")
    for t in range(9):
        e(f"v_add_u32 {vr(vT+t)}, {vr(MM + t // 3)}, {vr(mm + t % 3)}")
    e(f"v_mul_u32_u24 {vr(t0)}, 768, {vr(vG)}")
    e(f"v_add_u32 {vr(t0)}, {vr(t0)}, {vr(vTabR)}")
    e(f"ds_write_b128 {vr(t0)}, {vr(vT,4)}")
    e(f"ds_write_b128 {vr(t0)}, {vr(vT+4,4)} offset:16")
    e(f"ds_write_b32 {vr(t0)}, {vr(vT+8)} offset:32")
    e(f"s_mov_b32 s{sClip}, 0x435f435f")
    e(f"v_add_u32 {vr(t0)}, {s('Aabs')}, {vr(vKi)}")
    e(f"v_add3_u32 {vr(t0+1)}, {vr(vBm)}, {vr(vKj)}, -1")
    e(f"v_cvt_f32_i32 {vr(vFa)}, {vr(t0)}")
    e(f"v_cvt_f32_i32 {vr(vFb)}, {vr(t0+1)}")
    e(f"v_add_f32 {vr(vFa+1)}, 1.0, {vr(vFa)}")
    e(f"v_add_f32 {vr(vFb+1)}, 0x41c00000, {vr(vFb)}")
    for p in range(4):
        e(f"v_cvt_pk_bf16_f32 {vr(vRg+p)}, {vr(vFa + (p & 1))}, {vr(vFb + (p >> 1))}")
    for p in range(4):
        e(f"v_pk_max_i16 {vr(vRg+p)}, {vr(vRg+p)}, 0")
    for p in range(4):
        e(f"v_pk_min_i16 {vr(vRg+p)}, {vr(vRg+p)}, s{sClip}")
    e(f"v_mad_u32_u24 {vr(vTO)}, {vr(vBm)}, 48, {s('TabB')}")
    e(f"v_lshl_add_u32 {vr(vTO)}, {vr(vTap)}, 2, {vr(vTO)}")
    e("s_waitcnt lgkmcnt(0)")
    e("s_barrier")
    e(f"s_sub_u32 s{sT0}, {s('GS')}, {PIX}")
    for m in range(4):
        st = (0, 64, 128, 152)[m]
        j, z = t0, t0 + 1
        e(f"v_add_u32 {vr(j)}, {st}, {vr(vLane)}")
        e(f"v_mul_u32_u24 {vr(j)}, 5462, {vr(j)}")
        e(f"v_lshrrev_b32 {vr(j)}, 16, {vr(j)}")
        e(f"v_and_b32 {vr(z)}, 4, {vr(j)}")
        e(f"v_lshlrev_b32 {vr(z)}, 3, {vr(z)}")
        e(f"v_xor_b32 {vr(z)}, {vr(z)}, {vr(vWo)}")
        e(f"v_mad_u32_u24 {vr(vXB+m)}, {vr(j)}, s{sT0}, {vr(z)}")
        if m == 3:
            e(f"v_min_u32 {vr(z)}, {s('JmaxB')}, {vr(j)}")
            e(f"v_sub_u32 {vr(z)}, {vr(j)}, {vr(z)}")
            e(f"v_mul_u32_u24 {vr(z)}, {PIX}, {vr(z)}")
            e(f"v_sub_u32 {vr(vXB+m)}, {vr(vXB+m)}, {vr(z)}")
    r_, q_, g1 = t0, t0 + 1, t0 + 2
    e(f"v_bfe_u32 {vr(r_)}, {vr(vLane)}, 2, 2")
    e(f"v_lshl_add_u32 {vr(r_)}, {vr(vG)}, 3, {vr(r_)}")
    e(f"v_and_b32 {vr(q_)}, 3, {vr(vLane)}")
    e(f"v_mul_u32_u24 {vr(r_)}, {PIX}, {vr(r_)}")
    e(f"v_and_b32 {vr(g1)}, 1, {vr(vG)}")
    e(f"v_lshl_add_u32 {vr(r_)}, {vr(q_)}, 3, {vr(r_)}")
    for j in range(3):
        e(f"s_lshl2_add_u32 s{sT0}, s{sH}, {j}" if j < 2 else f"s_add_u32 s{sT0}, s{sH}, 2")
        e(f"v_xor_b32 {vr(t0+3)}, s{sT0}, {vr(g1)}")
        e(f"v_lshl_add_u32 {vr(vWb+j)}, {vr(t0+3)}, 5, {vr(r_)}")
    e(f"v_lshlrev_b32 {vr(vC1)}, 4, {vr(q_)}")
    e(f"v_lshl_add_u32 {vr(vC1)}, {vr(g1)}, 3, {vr(vC1)}")
    e(f"v_xor_b32 {vr(vC2)}, 8, {vr(vC1)}")
    e(f"v_lshrrev_b32 {vr(t0+3)}, 1, {vr(vG)}")
    e(f"v_lshlrev_b32 {vr(t0+3)}, 4, {vr(t0+3)}")
    e(f"v_lshl_add_u32 {vr(t0+3)}, {vr(g1)}, 5, {vr(t0+3)}")
    e(f"v_lshl_add_u32 {vr(t0+3)}, s{sH}, 7, {vr(t0+3)}")
    e(f"v_lshl_add_u32 {vr(t0+4)}, {vr(vG)}, 3, 64")
    e(f"v_lshl_add_u32 {vr(t0+4)}, s{sH}, 5, {vr(t0+4)}")
    e(f"v_mad_u32_u24 {vr(vO4A)}, {vr(vN)}, s{sT2}, {vr(t0+3)}")
    e(f"v_mad_u32_u24 {vr(vO2A)}, {vr(vN)}, s{sT2}, {vr(t0+4)}")
    e(f"v_mad_u32_u24 {vr(vO4L)}, {vr(vN)}, {s('GS')}, {vr(t0+3)}")
    e(f"v_mad_u32_u24 {vr(vO2L)}, {vr(vN)}, {s('GS')}, {vr(t0+4)}")
    e(f"s_add_u32 s{sOA1}, s{sOutA}, {ROWB}")
    e(f"s_add_u32 s{sOA2}, s{sOutA}, {2*ROWB}")
    e(f"s_mul_i32 s{sT0}, s{sPh}, {3*LINE}")
    e(f"s_add_u32 s{sT0}, s{sT0}, {XA}")
    for kj in range(3):
        e(f"v_add_u32 {vr(t0)}, {kj}, {vr(vN)}")
        e(f"v_and_b32 {vr(t0+1)}, 4, {vr(t0)}")
        e(f"v_lshl_add_u32 {vr(t0+1)}, {vr(t0+1)}, 3, s{sT0}")
        e(f"v_mad_u32_u24 {vr(t0+1)}, {vr(t0)}, s{sT2}, {vr(t0+1)}")
        e(f"v_xor_b32 {vr(vB+kj)}, {vr(t0+1)}, {vr(vG16)}")
    e(f"s_lshl_b32 s{sT0}, s{sW}, 10")
    e(f"s_add_u32 s{sT0}, s{sT0}, {DESC}")
    e(f"v_lshrrev_b32 {vr(t0)}, 3, {vr(vLane)}")
    e(f"v_lshl_add_u32 {vr(t0)}, {vr(t0)}, 4, s{sT0}")
    e(f"v_and_or_b32 {vr(vDA)}, {vr(vLane)}, 4, {vr(t0)}")
    e(f"v_lshl_add_u32 {vr(vDW)}, {vr(vN)}, 4, s{sT0}")
    e(f"v_and_b32 {vr(t0)}, 14, {vr(vN)}")
    e(f"v_lshlrev_b32 {vr(t0)}, 2, {vr(t0)}")
    e(f"v_xor_b32 {vr(t0)}, {vr(t0)}, {vr(vG16)}")
    e(f"v_mad_u32_u24 {vr(t0)}, {vr(vN)}, s{sT2}, {vr(t0)}")
    e(f"v_lshl_add_u32 {vr(vWA)}, s{sWm}, 2, {vr(t0)}")
    e(f"v_xor_b32 {vr(vWA+1)}, 8, {vr(vWA)}")
    e(f"s_movk_i32 s{sT0}, {OFFROW - 576}")
    e(f"v_mov_b32 {vr(t0+2)}, {OOB:#x}")
    for u in range(2):
        i_ = 0 if u == 0 else t0 + 3
        if u: e(f"v_add_u32 {vr(i_)}, 256, v0")
        e(f"v_cmp_gt_u32 vcc, {s('NA36')}, {vr(i_)}")
        e(f"v_mul_u32_u24 {vr(t0)}, 1821, {vr(i_)}")
        e(f"v_lshrrev_b32 {vr(t0)}, 16, {vr(t0)}")
        e(f"v_lshlrev_b32 {vr(t0+1)}, 4, {vr(i_)}")
        e(f"v_mad_u32_u24 {vr(t0+1)}, {vr(t0)}, s{sT0}, {vr(t0+1)}")
        e(f"v_lshlrev_b32 {vr(vKb+u)}, {vr(t0)}, 1")
        e(f"v_cndmask_b32 {vr(vKa+u)}, {vr(t0+2)}, {vr(t0+1)}, vcc")
    e(f"s_mov_b32 s{sFFFF}, 0xffff")
    e(f"s_mov_b32 s{sNeg}, {(-48 * LIST) & 0xffffffff:#x}")
    e(f"s_mov_b32 s{sCnt}, 0")
    stamp("prep")
    loads(parts[1])
    e(f"s_cmp_eq_u32 {s('Bmask')}, 0")
    e("s_cbranch_scc1 L_nob")
    vmwait("O")
    stamp("offs")
    for p in range(4):
        e(f"v_perm_b32 {vr(t0+2*p)}, {vr(vD+p)}, {vr(vD+p)}, s{sSelA}")
        e(f"v_perm_b32 {vr(t0+2*p+1)}, {vr(vD+p)}, {vr(vD+p)}, s{sSelB}")
    for p in range(4):
        e(f"v_add_f32 {vr(t0+2*p)}, {vr(vFa + (p & 1))}, {vr(t0+2*p)}")
        e(f"v_add_f32 {vr(t0+2*p+1)}, {vr(vFb + (p >> 1))}, {vr(t0+2*p+1)}")
    for p in range(4):
        e(f"v_cvt_pk_bf16_f32 {vr(vP+p)}, {vr(t0+2*p)}, {vr(t0+2*p+1)}")
    for p in range(4):
        e(f"v_pk_max_i16 {vr(vP+p)}, {vr(vP+p)}, 0")
    for p in range(4):
        e(f"v_pk_min_i16 {vr(vP+p)}, {vr(vP+p)}, s{sClip}")
    for p in range(4):
        e(f"v_xor_b32 {vr(t0+p)}, {vr(vP+p)}, {vr(vRg+p)}")
    mS = lambda p: f"s[{sM+4*p}:{sM+4*p+1}]"
    mD = lambda p: f"s[{sM+4*p+2}:{sM+4*p+3}]"
    for p in range(4):
        e(f"v_cmp_ne_u16 {mS(p)}, 0, {vr(t0+p)}")
        e(f"v_cmp_lt_u32 {mD(p)}, s{sFFFF}, {vr(t0+p)}")
    nS = [F["Off0"] + p for p in range(4)]
    for p in range(4):
        e(f"s_xor_b64 {mS(p)}, {mS(p)}, {mD(p)}")
        e(f"s_andn2_b64 {mD(p)}, {mD(p)}, {mS(p)}")
        e(f"s_bcnt1_i32_b64 s{nS[p]}, {mS(p)}")
        e(f"s_bcnt1_i32_b64 s{sND2 if p == 0 else sT0}, {mD(p)}")
        if p:
            e(f"s_add_u32 s{sND2}, s{sND2}, s{sT0}")
    e(f"s_lshl_b32 s{sND2}, s{sND2}, 1")
    e(f"s_add_u32 s{sT0}, s{nS[0]}, s{nS[1]}")
    e(f"s_add_u32 s{sT1}, s{nS[2]}, s{nS[3]}")
    e(f"s_add_u32 s{sT0}, s{sT0}, s{sND2}")
    e(f"s_add_u32 s{sT0}, s{sT0}, s{sT1}")
    e(f"s_cmp_gt_u32 s{sT0}, 64")
    e("s_cbranch_scc1 L_bfail")
    e(f"s_mov_b32 s{sCnt}, s{sT0}")
    e(f"s_lshl_b32 s{sBase}, s{sW}, 6")
    e(f"s_add_u32 s{sBase}, s{sBase}, {LIST // 4}")
    def compact(p, m, sh, base, data):
        lo = int(m[2:m.index(":")])
        i_, sl = t0 + 2 * (p & 1), t0 + 1 + 2 * (p & 1)
        e(f"s_mov_b64 exec, {m}")
        e(f"v_mbcnt_lo_u32_b32 {vr(i_)}, s{lo}, 0")
        e(f"v_mbcnt_hi_u32_b32 {vr(i_)}, s{lo+1}, {vr(i_)}")
        e(f"v_add_lshl_u32 {vr(i_)}, {vr(i_)}, s{base}, {sh}")
        e(f"v_mad_u32_u24 {vr(sl)}, {vr(i_)}, 48, s{sNeg}")
        e(data(i_))
        e(f"v_and_or_b32 {vr(sl)}, {vr(i_)}, 48, {vr(sl)}")
        e(f"ds_write_b32 {vr(vTO)}, {vr(sl)} offset:{(p & 1) * 3072 + (p >> 1) * 24 * 48}")
    e(f"s_cmp_lg_u32 s{sND2}, 0")
    e("s_cbranch_scc1 L_doubles")
    e.label("L_singles")
    e(f"s_add_u32 s{sBase}, s{sBase}, s{sND2}")
    for p in range(4):
        compact(p, mS(p), 2, sBase, lambda i_: f"ds_write_b32 {vr(i_)}, {vr(vP+p)}")
        if p < 3:
            e(f"s_add_u32 s{sBase}, s{sBase}, s{nS[p]}")
    e("s_mov_b64 exec, -1")
    b = 112
    Pc, pa, pb, a0, a1, b0, b1, wa, wb, ua, ub, w00, w01, w10, w11, tA, tB = range(b, b + 17)
    Dd = 132
    mDd, mDo, mDe = sM, sM + 2, sM + 4
    e(f"v_lshlrev_b32 {vr(tA)}, 2, v0")
    e(f"v_add_u32 {vr(tA)}, {LIST}, {vr(tA)}")
    e(f"ds_read_b32 {vr(Pc)}, {vr(tA)}")
    e(f"v_cmp_gt_u32 s[{mDd}:{mDd+1}], s{sND2}, {vr(vLane)}")
    e(f"v_cmp_gt_u32 vcc, s{sCnt}, {vr(vLane)}")
    e(f"v_mov_b32 {vr(tB)}, {s('P0')}")
    e(f"v_lshlrev_b32 {vr(tA)}, 4, v0")
    e(f"v_add_u32 {vr(tA)}, {DESC}, {vr(tA)}")
    e(f"s_and_b32 s{mDe}, s{mDd}, 0x55555555")
    e(f"s_and_b32 s{mDe+1}, s{mDd+1}, 0x55555555")
    e(f"s_andn2_b64 s[{mDo}:{mDo+1}], s[{mDd}:{mDd+1}], s[{mDe}:{mDe+1}]")
    e("s_waitcnt lgkmcnt(0)")
    e(f"v_cndmask_b32 {vr(Pc)}, {vr(tB)}, {vr(Pc)}, vcc")
    def weights(Pc, pa, pb, a0, a1, b0, b1, wa, wb, ua, ub, w00, w01, w10, w11):
        e(f"v_lshlrev_b32 {vr(pa)}, 16, {vr(Pc)}")
        e(f"v_and_b32 {vr(pb)}, 0xffff0000, {vr(Pc)}")
        e(f"v_fract_f32 {vr(wa)}, {vr(pa)}")
        e(f"v_fract_f32 {vr(wb)}, {vr(pb)}")
        e(f"v_ceil_f32 {vr(a1)}, {vr(pa)}")
        e(f"v_ceil_f32 {vr(b1)}, {vr(pb)}")
        e(f"v_sub_f32 {vr(ua)}, 1.0, {vr(wa)}")
        e(f"v_sub_f32 {vr(ub)}, 1.0, {vr(wb)}")
        e(f"v_cvt_u32_f32 {vr(a0)}, {vr(pa)}")
        e(f"v_cvt_u32_f32 {vr(b0)}, {vr(pb)}")
        e(f"v_cvt_pk_bf16_f32 {vr(ub)}, {vr(ua)}, {vr(ub)}")
        e(f"v_cvt_u32_f32 {vr(a1)}, {vr(a1)}")
        e(f"v_cvt_u32_f32 {vr(b1)}, {vr(b1)}")
        e(f"v_lshlrev_b32 {vr(ua)}, 16, {vr(ub)}")
        e(f"v_and_b32 {vr(ub)}, 0xffff0000, {vr(ub)}")
        e(f"v_mul_f32 {vr(w11)}, {vr(wa)}, {vr(wb)}")
        e(f"v_mul_f32 {vr(w01)}, {vr(ua)}, {vr(wb)}")
        e(f"v_mul_f32 {vr(w10)}, {vr(wa)}, {vr(ub)}")
        e(f"v_mul_f32 {vr(w00)}, {vr(ua)}, {vr(ub)}")
    weights(Pc, pa, pb, a0, a1, b0, b1, wa, wb, ua, ub, w00, w01, w10, w11)
    e(f"v_subrev_u32 {vr(a0)}, {s('Aorg')}, {vr(a0)}")
    e(f"v_subrev_u32 {vr(a1)}, {s('Aorg')}, {vr(a1)}")
    e(f"v_add_f32 {vr(tB)}, {vr(w01)}, {vr(w10)}")
    e(f"v_cvt_pk_bf16_f32 {vr(Dd+3)}, {vr(w10)}, {vr(w11)}")
    e(f"v_max_u32 {vr(pa)}, {vr(a0)}, {vr(a1)}")
    e(f"v_cndmask_b32 {vr(w01)}, {vr(tB)}, {vr(w01)}, s[{mDd}:{mDd+1}]")
    e(f"v_cndmask_b32 {vr(Dd+3)}, 0, {vr(Dd+3)}, s[{mDd}:{mDd+1}]")
    e(f"v_cmp_le_u32 vcc, {s('NL')}, {vr(pa)}")
    e(f"v_cmp_le_u32 s[{mDd}:{mDd+1}], {s('Wd')}, {vr(b1)}")
    e(f"v_cvt_pk_bf16_f32 {vr(Dd+2)}, {vr(w00)}, {vr(w01)}")
    e(f"v_cndmask_b32 {vr(pa)}, {vr(a0)}, {vr(a1)}, s[{mDo}:{mDo+1}]")
    e(f"v_cndmask_b32 {vr(pb)}, {vr(a1)}, {vr(a0)}, s[{mDe}:{mDe+1}]")
    for k, (aa, bb_) in enumerate(((pa, b0), (pb, b1))):
        e(f"v_and_b32 {vr(tB)}, 4, {vr(bb_)}")
        e(f"v_lshl_add_u32 {vr(tB)}, {vr(tB)}, 3, {s('BW')}")
        e(f"v_mad_u32_u24 {vr(tB)}, {vr(bb_)}, s{sT2}, {vr(tB)}")
        e(f"v_mad_u32_u24 {vr(Dd+k)}, {vr(aa)}, {s('SA')}, {vr(tB)}")
    e(f"ds_write_b128 {vr(tA)}, {vr(Dd,4)}")
    e(f"s_or_b64 vcc, vcc, s[{mDd}:{mDd+1}]")
    e("s_cbranch_scc1 L_bfail")
    e.label("L_nob")
    stamp("desc")
    loads(parts[2])
    e(f"s_mov_b32 s{sM}, 0x00040001")
    e(f"s_mov_b32 s{sM+1}, 0x00400010")
    for d, sh in ((1, 1), (2, 8), (3, 9)):
        e(f"s_lshl_b64 s[{sM+2*d}:{sM+2*d+1}], s[{sM}:{sM+1}], {sh}")
    e(f"s_mov_b32 s{sAbs}, 0x7fff7fff")
    def trd(sg, j, h):
        c, ki = SL[sg]
        kj, s_ = divmod(c, 3)
        return f"ds_read_b64_tr_b16 {wreg(3*ki+kj, s_, j, 2, 2*h)}, {vr(vWb+j)} offset:{(sg % 10) * 6144 + 768*h}"
    vmwait("R0", lgkm=True)
    e("s_barrier")
    stamp("w0")
    for sg in range(2):
        for j in range(3):
            for h in range(2): e(trd(sg, j, h))
    vmwait("R1", *[f"L{k}" for k in range(6)], lgkm=True)
    e("s_barrier")
    stamp("lines")

    S = Sched(e, vmq, lat=LAT)
    qF, qT, qV, qU, qX = S.stream(), S.stream(), S.stream(), S.stream(), S.stream()
    keys, mf = [], []
    seen = set()
    for sg, (c, ki) in enumerate(SL):
        kj, s_ = divmod(c, 3)
        for i in range(3):
            keys.append(("p", i + ki, kj, s_)); mf.append((3*ki + kj, s_, vAcc + 12*i, i not in seen)); seen.add(i)
    P1 = len(keys)
    NB = 4
    accL = [vAcc + 12 * k for k in (3, 0, 1, 2)]
    for u in range(NB):
        for st in range(27):
            keys.append(("l", u, st // 3, st % 3)); mf.append((st // 3, st % 3, accL[u], st == 0))
    BX = P1 - 3
    bars = list(range(6, BX, 6)) + [BX]
    for k in bars:
        S.bounds[k] = dict(vm=[], bar=True, txt=[], post=[])
    linebar = {}
    for l in (3, 4):
        first = min(k for k, key in enumerate(keys) if key[0] == "p" and key[1] == l)
        cand = [k for k in bars if 3 * k <= 3 * first - 5]
        if cand:
            linebar[l] = cand[-1]; S.bounds[cand[-1]]["vm"].append(f"L{l+3}")
        else:
            raise SystemExit("line needed before the first barrier")
    tabr, xors = {}, {}
    fr_items = {}
    g0 = lambda u: P1 + 27 * u
    RW = 4
    iv = []
    cur = {}
    for k, key in enumerate(keys):
        if key in cur and k - cur[key][2] <= RW:
            cur[key][2] = k
        else:
            cur[key] = [key, k, k]; iv.append(cur[key])
    free = [-1] * NFR
    use = {}
    for u in range(NB):
        tg = 3 * BX - 30 if u == 0 else 3 * g0(u - 1) + 1
        tabr[u] = [Item(f"tab{u}{k}", txt, "lds", tg + 3 * k, tg + 3 * k + 12)
                   for k, txt in enumerate((f"ds_read_b128 {vr(vR,4)}, {vr(vTabR)} offset:{768*u}",
                                            f"ds_read_b128 {vr(vR+4,4)}, {vr(vTabR)} offset:{768*u+16}",
                                            f"ds_read_b32 {vr(vR+8)}, {vr(vTabR)} offset:{768*u+32}"))]
        for t in range(9):
            xors[u, t] = Item(f"xor{u}{t}", f"v_xor_b32 {vr(vA+t)}, {vr(vR+t)}, {vr(vG16)}", "valu", tg + 12,
                              min(3 * (g0(u) + 3 * t) - LEAD - 1, 3 * g0(u) - 1 if u == 0 else 3 * g0(u)), cov=[tabr[u][t // 4]])
        if u:
            for k in range(3):
                tabr[u][k].pre = [(xors[u - 1, t], 0) for t in range(4 * k, min(9, 4 * k + 4))]
    for key, k0, k1 in iv:
        bi = min(range(NFR), key=lambda x: free[x])
        assert free[bi] < k0
        reg = vr(vFr + 4 * bi, 4)
        early = 3 * free[bi] + 2
        if key[0] == "p":
            _, l, kj, s_ = key
            txt = f"ds_read_b128 {reg}, {vr(vB+kj)} offset:{l*LINE + 64*s_}"
            early = max(early, 3 * linebar.get(l, -1))
            pre = []
        else:
            _, u, t, s_ = key
            txt = f"ds_read_b128 {reg}, {vr(vA+t)} offset:{64*s_}"
            early = max(early, 3 * BX)
            pre = [(xors[u, t], 0)]
        it = Item(f"f{key}", txt, "lds", max(early, 3 * k0 - LEAD), max(3 * k0 - 5, -1), pre=pre)
        assert it.target <= it.deadline, (key, early, k0)
        if key[0] == "l" and key[1] + 1 < NB:
            xors[key[1] + 1, key[2]].pre.append((it, 0))
        qF.append(it); fr_items[key] = it
        free[bi] = k1
        for k in range(k0, k1 + 1):
            if keys[k] == key: use[k] = (reg, it)
    tr_items = {}
    for sg in range(2, 27):
        k0 = 3 * sg
        early = 3 * 6 * (sg // 2 - 1)
        tr_items[sg] = [Item(f"tr{sg}{j}{h}", trd(sg, j, h), "lds", max(early, 3 * k0 - 18 + (3 * (2*j + h)) // 2), 3 * k0 - 6)
                        for j in range(3) for h in range(2)]
        qT += tr_items[sg]
    flagrd = Item("flag", f"ds_read_b32 {vr(vFlag)}, {vr(vFlagA)}", "lds", 3 * P1 + 20, 3 * P1 + 40)
    allT = qT + tabr[0]
    allT.sort(key=lambda x: x.target)
    qT[:] = allT + tabr[1] + [flagrd] + tabr[2] + tabr[3]
    for u in range(NB):
        qX += [xors[u, t] for t in range(9)]
    for k, (t, s_, acc, first) in enumerate(mf):
        reg, it = use[k]
        need = [it] + (tr_items.get(k // 3, []) if k < P1 else [])
        S.groups.append(([f"v_mfma_f32_16x16x32_bf16 {vr(acc+4*j,4)}, {wreg(t,s_,j)}, {reg}, {0 if first else vr(acc+4*j,4)}" for j in range(3)], need))
    issued = [int(x[1:]) for x in ORDER.replace("|", " ").split() if x[0] == "R"]
    def xjob(k):
        return [f"s_mov_b32 m0, s{sJob+2*k}"] + [
            f"buffer_load_dwordx4 {vr(vXB+m)}, s[{SX}:{SX+3}], s{sJob+2*k+1} offen{f' offset:{o}' if o else ''} {XF} lds"
            for m, o in enumerate((0, 1024, 2048, 2432))]
    for per in range(13):
        g = 18 * per
        big = per in JOBAT
        r = per + 4
        seq = []
        if per == 9:
            for u in range(2):
                seq.append(("K", f"buffer_load_dwordx4 {vr(vKd+4*u,4)}, {vr(vKa+u)}, s[{SO}:{SO+3}], {s('OffA')} offen {OF}"))
        if r <= 13 and r not in issued:
            su = wsetup(r)
            seq += [(None, su[0]), (None, su[1])] + [(f"R{r}", wdma(m)) for m in range(3)]
        if big:
            jb = xjob(JOBAT.index(per))
            seq += [(None, jb[0])] + [("X", x) for x in jb[1:]]
        if per == 8:
            seq.append((None, [f"s_cmp_lg_u32 {s('Extra')}, 0", "s_cbranch_scc1 L_extra", "L_extra_back:"]))
        prev = None
        for n, (nm, txt) in enumerate(seq):
            it = Item(nm or "su", txt, "vm" if nm else "salu", g + (n * 17) // len(seq), g + 30,
                      pre=[(prev, 1)] if prev is not None and "m0" in prev.txt[0] else [], weight=2 if isinstance(txt, list) else 1)
            qV.append(it); prev = it
    for k in bars:
        if k < BX: S.bounds[k]["vm"].append(f"R{k // 6 + 1}")
    S.bounds[BX]["vm"] += ["X", "R13"]
    S.bounds[72]["vm"].append("K")
    tg = 3 * 72
    chk = []
    for u in range(2):
        for d in range(4):
            chk.append(f"v_and_b32 {vr(vKd+4*u+d)}, s{sAbs}, {vr(vKd+4*u+d)}")
        chk.append(f"v_pk_max_u16 {vr(vKd+4*u)}, {vr(vKd+4*u)}, {vr(vKd+4*u+1)}")
        chk.append(f"v_pk_max_u16 {vr(vKd+4*u+2)}, {vr(vKd+4*u+2)}, {vr(vKd+4*u+3)}")
        chk.append(f"v_pk_max_u16 {vr(vKd+4*u)}, {vr(vKd+4*u)}, {s('Thr')}")
        chk.append(f"v_pk_max_u16 {vr(vKd+4*u)}, {vr(vKd+4*u)}, {vr(vKd+4*u+2)}")
        chk.append(f"v_cmp_ne_u32 s[{mK+2*u}:{mK+2*u+1}], {s('Thr')}, {vr(vKd+4*u)}")
    for ln in chk:
        qU.append(Item("chk", ln, "valu", tg, 3 * BX - 2))
    S.bounds[BX]["txt"] = [f"s_or_b64 vcc, s[{mK}:{mK+1}], s[{mK+2}:{mK+3}]", "s_cbranch_scc1 L_afail", "L_afail_back:"]
    def epi_text(acc, E, o4, o2, so):
        cv = [f"v_cvt_pk_bf16_f32 {vr(E+k)}, {vr(acc+2*k)}, {vr(acc+2*k+1)}" for k in range(6)]
        sw = [f"v_permlane16_swap_b32 {vr(E+k)}, {vr(E+2+k)}" for k in range(2)]
        st = [f"buffer_store_dwordx4 {vr(E,4)}, {vr(o4)}, s[{SOUT}:{SOUT+3}], s{so} offen {SF}",
              f"buffer_store_dwordx2 {vr(E+4,2)}, {vr(o2)}, s[{SOUT}:{SOUT+3}], s{so} offen {SF}"]
        return cv, sw, st
    lastE = {}
    def epi_items(n, acc, lastgroup, o4, o2, so, tg, dl):
        E = vE[n % 2]
        cv, sw, st = epi_text(acc, E, o4, o2, so)
        ci = [Item("cvt", x, "valu", tg + k, dl, mf=[(3 * lastgroup + k // 2, 8)], pre=[(p, 2) for p in lastE.get(E, [])]) for k, x in enumerate(cv)]
        si = [Item("swap", x, "valu", tg + 6 + k, dl, pre=[(ci[k], 2), (ci[2 + k], 2)]) for k, x in enumerate(sw)]
        ti = [Item("st", x, "vm", tg + 9 + 4 * k, dl) for k, x in enumerate(st)]
        lastE[E] = ti
        qU.extend(ci + si + ti)
    for i in range(3):
        epi_items(i, vAcc + 12 * i, P1 - 3 + i, vO4A, vO2A, (sOutA, sOA1, sOA2)[i], 3 * P1 + 2 + 24 * i, 3 * g0(1) - 2)
    qU.append(Item("rfl", f"v_readfirstlane_b32 s{sFlag}, {vr(vFlag)}", "valu", 3 * g0(1) - 5, 3 * g0(1) + 5, cov=[flagrd]))
    for u in range(NB - 1):
        epi_items(3 + u, accL[u], g0(u + 1) - 1, vO4L, vO2L, sOutL + u, 3 * g0(u + 1) + 3, 3 * g0(u + 2) - 2)
    S.bounds[P1] = dict(txt=[f"s_cmp_lg_u32 {s('Bmask')}, 0", "s_cbranch_scc1 L_patch", "L_patch_back:"], post=[lambda: stamp("late")])
    S.bounds[g0(3)] = dict(txt=[f"s_cmp_eq_u32 {s('NR')}, 3", "s_cbranch_scc1 L_fin2"])
    if DIAG:
        for k in (12, 24, 36, 48, 60, 72, BX):
            S.bounds[k]["post"].append(lambda k=k: stamp(f"g{k}"))
    S.run()
    print(f"slots over budget: {S.over}, waits: {S.nwait}, fragment reads: {len(iv)}", file=sys.stderr)
    def final(acc, o4, o2, so):
        cv, sw, st = epi_text(acc, vE[0], o4, o2, so)
        e("s_nop 5")
        for x in cv + sw + st: e(x)
    final(accL[3], vO4L, vO2L, sOutL + 3)
    e.label("L_check")
    e(f"s_cmp_lg_u32 s{sFlag}, 0")
    e("s_cbranch_scc1 L_slow")
    e.label("L_done")
    if DIAG:
        stamp("issued_end")
        e("s_waitcnt vmcnt(0)")
        stamp("end")
        e("s_load_dwordx2 s[8:9], s[0:1], 40")
        e(f"v_writelane_b32 {vr(vDiag)}, s{sCnt}, 29")
        e(f"v_writelane_b32 {vr(vDiag)}, {s('NA36')}, 30")
        e(f"v_writelane_b32 {vr(vDiag)}, {s('PixA')}, 31")
        e("s_getpc_b64 s[4:5]")
        e.label("L_pc2")
        e(f"s_sub_u32 s4, s{sTab}, s4")
        e(f"s_sub_u32 s4, s4, L_table-L_pc2")
        e(f"s_lshl_b32 s5, s{sW}, 7")
        e("s_add_u32 s4, s4, s5")
        e(f"v_lshlrev_b32 v1, 2, {vr(vLane)}")
        e("s_waitcnt lgkmcnt(0)")
        e("s_mov_b32 exec_hi, 0")
        e(f"buffer_store_dword {vr(vDiag)}, v1, s[8:11], s4 offen")
    e.label("L_end")
    e("s_endpgm")
    e.label("L_fin2")
    final(accL[2], vO4L, vO2L, sOutL + 2)
    e("s_branch L_check")

    e.label("L_patch")
    dat, Dm, Bm, Ad = (100, 124), 148, 172, 176
    dsc = (52, 56, 60, 184)
    e(f"s_cmp_eq_u32 s{sCnt}, 0")
    e("s_cbranch_scc1 L_patch_end")
    for gm in range(4):
        e(f"ds_read2_b32 {vr(dsc[gm],2)}, {vr(vDA)} offset0:{64*gm} offset1:{64*gm+32}")
        e(f"ds_read_b64 {vr(dsc[gm]+2,2)}, {vr(vDW)} offset:{256*gm+8}")
    def addr(gm):
        for h in range(2):
            e(f"v_xor_b32 {vr(Ad+2*h)}, {vr(dsc[gm]+h)}, {vr(vC1)}")
            e(f"v_xor_b32 {vr(Ad+2*h+1)}, {vr(dsc[gm]+h)}, {vr(vC2)}")
    def gath(gm):
        return [f"ds_read_b64_tr_b16 {vr(dat[gm % 2] + 8*s_ + 4*X + 2*h, 2)}, {vr(Ad+2*h+X)} offset:{64*s_}"
                for s_ in range(3) for X in range(2) for h in range(2)]
    e("s_waitcnt lgkmcnt(7)")
    addr(0)
    for x in gath(0): e(x)
    e("s_waitcnt lgkmcnt(12)")
    M = lambda d: f"s[{sM+2*d}:{sM+2*d+1}]"
    for gm in range(4):
        W1, W2 = dsc[gm] + 2, dsc[gm] + 3
        e(f"v_cndmask_b32 {vr(Bm+1)}, 0, {vr(W2)}, {M(0)}")
        e(f"v_cndmask_b32 {vr(Bm+3)}, 0, {vr(W2)}, {M(2)}")
        e(f"v_cndmask_b32 {vr(Bm)}, 0, {vr(W1)}, {M(0)}")
        e(f"v_cndmask_b32 {vr(Bm+2)}, 0, {vr(W1)}, {M(2)}")
        e(f"v_cndmask_b32 {vr(Bm+1)}, {vr(Bm+1)}, {vr(W1)}, {M(1)}")
        e(f"v_cndmask_b32 {vr(Bm+3)}, {vr(Bm+3)}, {vr(W1)}, {M(3)}")
        nxt = []
        if gm < 3:
            addr(gm + 1); nxt = gath(gm + 1)
        else:
            e("s_nop 0")
        e(f"s_waitcnt lgkmcnt({6 if gm else 0})")
        for k in range(6):
            e(f"v_mfma_f32_16x16x32_bf16 {vr(Dm+4*k,4)}, {vr(dat[gm % 2]+4*k,4)}, {vr(Bm,4)}, 0")
            for x in nxt[2*k:2*k+2]: e(x)
        if gm == 3: e("s_nop 3")
        for k in range(6):
            e(f"v_cvt_pk_bf16_f32 {vr(Dm+4*k)}, {vr(Dm+4*k)}, {vr(Dm+4*k+1)}")
            e(f"v_cvt_pk_bf16_f32 {vr(Dm+4*k+1)}, {vr(Dm+4*k+2)}, {vr(Dm+4*k+3)}")
            e(f"ds_write_b64 {vr(vWA + k % 2)}, {vr(Dm+4*k,2)} offset:{3072*gm + 64*(k // 2)}")
        if gm < 3:
            e(f"s_cmp_le_u32 s{sCnt}, {16*(gm+1)}")
            e("s_cbranch_scc1 L_patch_end")
    e.label("L_patch_end")
    e("s_waitcnt lgkmcnt(0)")
    e("s_barrier")
    for key, it in fr_items.items():
        if key[0] == "l" and it.gap < 3 * P1:
            e(it.txt[0])
    e("s_waitcnt lgkmcnt(0)")
    e("s_branch L_patch_back")

    e.label("L_doubles")
    e(f"s_lshr_b32 s{sT1}, s{sBase}, 1")
    for p in range(4):
        compact(p, mD(p), 3, sT1, lambda i_: f"ds_write2_b32 {vr(i_)}, {vr(vP+p)}, {vr(vP+p)} offset1:1")
        if p < 3:
            e(f"s_bcnt1_i32_b64 s{sT0}, {mD(p)}")
            e(f"s_add_u32 s{sT1}, s{sT1}, s{sT0}")
    e("s_branch L_singles")

    e.label("L_extra")
    for k in (3, 4):
        jb = xjob(k)
        e(jb[0]); e("s_nop 0")
        for x in jb[1:]: e(x)
    e("s_branch L_extra_back")
    e.label("L_hot_end")

    e.label("L_bfail")
    e(f"v_mov_b32 {vr(t0)}, {s('Bmask')}")
    e(f"s_mov_b32 s{sCnt}, 0")
    e(f"ds_or_b32 {vr(vFlagA)}, {vr(t0)}")
    e("s_branch L_nob")
    e.label("L_afail")
    for u in range(2):
        e(f"s_mov_b64 exec, s[{mK+2*u}:{mK+2*u+1}]")
        e(f"ds_or_b32 {vr(vFlagA)}, {vr(vKb+u)}")
    e("s_mov_b64 exec, -1")
    e("s_waitcnt lgkmcnt(0)")
    e("s_branch L_afail_back")

    e.label("L_slow")
    sBit, sPix, sStr, sIt = 80, 81, 82, 83
    SD = XA
    e("s_waitcnt vmcnt(0) lgkmcnt(0)")
    e("s_barrier")
    e(f"s_ff1_i32_b32 s{sBit}, s{sFlag}")
    e(f"s_bitset0_b32 s{sFlag}, s{sBit}")
    e(f"s_mul_i32 s{sPix}, s{sBit}, {W}")
    e(f"s_add_u32 s{sPix}, s{sPix}, {s('PixA')}")
    e(f"s_mov_b32 s{sStr}, 1")
    e(f"s_cmp_lt_u32 s{sBit}, 6")
    e("s_cbranch_scc1 L_s1")
    e(f"s_sub_u32 s{sT0}, s{sBit}, 6")
    e(f"s_and_b32 s{sT1}, s{sT0}, 1")
    e(f"s_lshr_b32 s{sT0}, s{sT0}, 1")
    e(f"s_lshl2_add_u32 s{sT0}, s{sT1}, s{sT0}")
    e(f"s_lshl4_add_u32 s{sT0}, s{sT0}, {384 + 12}")
    e(f"s_load_dword s{sPix}, s[{sTab}:{sTab+1}], s{sT0}")
    e(f"s_cmp_eq_u32 {s('Tr')}, 0")
    e(f"s_cselect_b32 s{sStr}, 1, {W}")
    e("s_waitcnt lgkmcnt(0)")
    e.label("L_s1")
    b = 64
    Pc, pa, pb, a0, a1, b0, b1, wa, wb, ua, ub, w00, w01, w10, w11, px, tp, y, x, ki, kj, dd = range(b, b + 22)
    Dd = 88
    e(f"s_movk_i32 s{sT2}, {PIX}")
    e(f"s_movk_i32 s{sT3}, {W}")
    e(f"v_mul_u32_u24 {vr(px)}, s{sStr}, {vr(vN)}")
    e(f"v_add_u32 {vr(px)}, s{sPix}, {vr(px)}")
    e(f"v_lshrrev_b32 {vr(tp)}, 4, v0")
    e(f"v_min_u32 {vr(tp)}, 8, {vr(tp)}")
    e(f"v_mul_u32_u24 {vr(dd)}, 36, {vr(px)}")
    e(f"v_lshl_add_u32 {vr(dd)}, {vr(tp)}, 2, {vr(dd)}")
    e(f"buffer_load_dword {vr(dd)}, {vr(dd)}, s[{SO}:{SO+3}], 0 offen")
    e(f"v_mul_u32_u24 {vr(y)}, 74899, {vr(px)}")
    e(f"v_lshrrev_b32 {vr(y)}, 24, {vr(y)}")
    e(f"v_mul_u32_u24 {vr(x)}, {W}, {vr(y)}")
    e(f"v_sub_u32 {vr(x)}, {vr(px)}, {vr(x)}")
    e(f"v_mul_u32_u24 {vr(ki)}, 11, {vr(tp)}")
    e(f"v_lshrrev_b32 {vr(ki)}, 5, {vr(ki)}")
    e(f"v_mad_i32_i24 {vr(kj)}, {vr(ki)}, -3, {vr(tp)}")
    e(f"v_add3_u32 {vr(y)}, {vr(y)}, {vr(ki)}, -1")
    e(f"v_add3_u32 {vr(x)}, {vr(x)}, {vr(kj)}, -1")
    e(f"v_cvt_f32_i32 {vr(y)}, {vr(y)}")
    e(f"v_cvt_f32_i32 {vr(x)}, {vr(x)}")
    e("s_waitcnt vmcnt(0)")
    e(f"v_lshlrev_b32 {vr(pa)}, 16, {vr(dd)}")
    e(f"v_and_b32 {vr(pb)}, 0xffff0000, {vr(dd)}")
    e(f"v_add_f32 {vr(pa)}, {vr(y)}, {vr(pa)}")
    e(f"v_add_f32 {vr(pb)}, {vr(x)}, {vr(pb)}")
    e(f"v_cvt_pk_bf16_f32 {vr(Pc)}, {vr(pa)}, {vr(pb)}")
    e(f"v_pk_max_i16 {vr(Pc)}, {vr(Pc)}, 0")
    e(f"v_pk_min_i16 {vr(Pc)}, {vr(Pc)}, s{sClip}")
    weights(Pc, pa, pb, a0, a1, b0, b1, wa, wb, ua, ub, w00, w01, w10, w11)
    for k, (aa, bb_) in enumerate(((a0, b0), (a0, b1), (a1, b0), (a1, b1))):
        e(f"v_mad_u32_u24 {vr(Dd+k)}, {vr(aa)}, s{sT3}, {vr(bb_)}")
        e(f"v_mul_u32_u24 {vr(Dd+k)}, {PIX}, {vr(Dd+k)}")
    e(f"v_cvt_pk_bf16_f32 {vr(Dd+4)}, {vr(w00)}, {vr(w01)}")
    e(f"v_cvt_pk_bf16_f32 {vr(Dd+5)}, {vr(w10)}, {vr(w11)}")
    e(f"v_lshlrev_b32 {vr(px)}, 5, v0")
    e(f"v_add_u32 {vr(px)}, {SD}, {vr(px)}")
    e(f"ds_write_b128 {vr(px)}, {vr(Dd,4)}")
    e(f"ds_write_b64 {vr(px)}, {vr(Dd+4,2)} offset:16")
    e(f"s_mov_b32 s{sIt}, 0")
    e("s_waitcnt lgkmcnt(0)")
    e("s_barrier")
    e.label("L_s2")
    G, DS_, SLT, AC, WL = 100, 64, 96, 164, 172
    for k in range(4):
        d = DS_ + 8 * k
        e(f"s_add_u32 s{sT0}, s{sIt}, {256*k}")
        e(f"v_add_u32 {vr(SLT+k)}, s{sT0}, v0")
        e(f"v_mul_u32_u24 {vr(d+6)}, 5462, {vr(SLT+k)}")
        e(f"v_lshrrev_b32 {vr(d+6)}, 16, {vr(d+6)}")
        e(f"v_mad_i32_i24 {vr(d+7)}, {vr(d+6)}, -12, {vr(SLT+k)}")
        e(f"v_lshlrev_b32 {vr(d+6)}, 5, {vr(d+6)}")
        e(f"v_add_u32 {vr(d+6)}, {SD}, {vr(d+6)}")
        e(f"ds_read_b128 {vr(d,4)}, {vr(d+6)}")
        e(f"ds_read_b64 {vr(d+4,2)}, {vr(d+6)} offset:16")
        e(f"v_lshlrev_b32 {vr(SLT+k)}, 4, {vr(SLT+k)}")
    e("s_waitcnt lgkmcnt(0)")
    for k in range(4):
        d = DS_ + 8 * k
        for c in range(4):
            e(f"v_lshl_add_u32 {vr(d+c)}, {vr(d+7)}, 4, {vr(d+c)}")
            e(f"buffer_load_dwordx4 {vr(G+16*k+4*c,4)}, {vr(d+c)}, s[{SX}:{SX+3}], 0 offen")
    for k in range(4):
        d = DS_ + 8 * k
        e(f"s_waitcnt vmcnt({12 - 4*k})")
        for c in range(4):
            if c % 2 == 0:
                e(f"v_lshlrev_b32 {vr(WL)}, 16, {vr(d+4+c//2)}")
            else:
                e(f"v_and_b32 {vr(WL)}, 0xffff0000, {vr(d+4+c//2)}")
            for q in range(4):
                src = G + 16*k + 4*c + q
                e(f"v_lshlrev_b32 {vr(WL+1)}, 16, {vr(src)}")
                e(f"v_and_b32 {vr(WL+2)}, 0xffff0000, {vr(src)}")
                op = "v_mul_f32" if c == 0 else "v_fmac_f32"
                e(f"{op} {vr(AC+2*q)}, {vr(WL)}, {vr(WL+1)}")
                e(f"{op} {vr(AC+2*q+1)}, {vr(WL)}, {vr(WL+2)}")
        for q in range(4):
            e(f"v_cvt_pk_bf16_f32 {vr(WL+4+q)}, {vr(AC+2*q)}, {vr(AC+2*q+1)}")
        e(f"ds_write_b128 {vr(SLT+k)}, {vr(WL+4,4)}")
    e(f"s_add_u32 s{sIt}, s{sIt}, 1024")
    e(f"s_cmp_lt_u32 s{sIt}, 1728")
    e("s_cbranch_scc1 L_s2")
    e("s_waitcnt lgkmcnt(0)")
    e("s_barrier")
    e(f"s_cmp_ge_u32 s{sW}, 2")
    e("s_cbranch_scc1 L_s3")
    e(f"v_mad_u32_u24 {vr(vA)}, {vr(vN)}, s{sT2}, {vr(vG16)}")
    for t in range(9):
        for s_ in range(3):
            e(f"ds_read_b128 {vr(vFr+4*s_,4)}, {vr(vA)} offset:{3072*t + 64*s_}")
        e("s_waitcnt lgkmcnt(0)")
        for s_ in range(3):
            for j in range(3):
                c = vr(vAcc + 4*j, 4)
                e(f"v_mfma_f32_16x16x32_bf16 {c}, {wreg(t,s_,j)}, {vr(vFr+4*s_,4)}, {c if t or s_ else 0}")
        e("s_nop 1")
    e(f"s_mul_i32 s{sPix}, s{sPix}, {PIX}")
    e(f"s_cmp_lt_u32 s{sBit}, 6")
    e("s_cselect_b64 vcc, -1, 0")
    e(f"v_cndmask_b32 {vr(vA)}, {vr(vO4L)}, {vr(vO4A)}, vcc")
    e(f"v_cndmask_b32 {vr(vA+1)}, {vr(vO2L)}, {vr(vO2A)}, vcc")
    final(vAcc, vA, vA + 1, sPix)
    e.label("L_s3")
    e("s_branch L_check")

    e.lines.append(".p2align 8")
    e.lines.append(".type L_table,@object")
    e.label("L_table")
    for words in geo14.table():
        for k in range(0, CUW, 16):
            e.lines.append("    .long " + ",".join(str(x) for x in words[k:k+16]))
    e.lines.append(".size L_table, .-L_table")

    head = f"""; DCNv1 (deformable 3x3 convolution with bf16-rounded sampling positions), 224x224x96 -> 96.
; @launch grid=({NWG},1,1) block=(256,1,1) lds={LDS_BYTES}
{'; stamps: ' + ' '.join(names) if DIAG else ''}
.amdgcn_target "amdgcn-amd-amdhsa--gfx950"
.text
.globl {KNAME}
.p2align 8
.type {KNAME},@function
{KNAME}:
"""
    tail = f""".section .rodata,"a"
.p2align 6
.amdhsa_kernel {KNAME}
  .amdhsa_next_free_vgpr 512
  .amdhsa_next_free_sgpr 102
  .amdhsa_accum_offset 256
  .amdhsa_group_segment_fixed_size 0
  .amdhsa_kernarg_size 48
  .amdhsa_user_sgpr_count 2
  .amdhsa_user_sgpr_kernarg_segment_ptr 1
  .amdhsa_system_sgpr_workgroup_id_x 1
  .amdhsa_float_denorm_mode_32 3
.end_amdhsa_kernel
"""
    return head + e.text() + tail

if __name__ == "__main__":
    assert all((i * 5462) >> 16 == i // 12 for i in range(2048))
    assert all((i * 7282) >> 16 == i // 9 for i in range(64))
    assert all((i * 1821) >> 16 == i // 36 for i in range(512))
    assert all((i * 74899) >> 24 == i // 224 for i in range(50176))
    out = sys.argv[1] if len(sys.argv) > 1 else "v14.s"
    open(out, "w").write(gen())
    print("wrote", out, "LDS", LDS_BYTES)
```

```python
import sys, os
MAIN = open("v11_cpf.s").read() if os.path.exists("v11_cpf.s") else None
KN = "standalone__deformable_dcnv1__vision_kernel"

def probe_src(body, K, lds=163840, who=None):
    pre, post = "", ""
    if isinstance(body, tuple):
        pre, body, post = body
    sel = ""
    if who is not None:
        sel = f"    s_cmp_lg_u32 s2, {who}\n    s_cbranch_scc1 P_end\n"
    return f""".p2align 8
.globl probe_kernel
.type probe_kernel,@function
probe_kernel:
    s_memrealtime s[40:41]
    s_memtime s[46:47]
    s_cmp_ge_u32 s2, 256
    s_cbranch_scc1 P_end
    s_load_dwordx8 s[48:55], s[0:1], 0
    s_load_dwordx4 s[56:59], s[0:1], 32
{pre}
    v_lshrrev_b32 v1, 6, v0
    v_and_b32 v2, 63, v0
    v_readfirstlane_b32 s3, v1
    s_waitcnt lgkmcnt(0)
    s_mov_b32 s8, s48
    s_and_b32 s9, s49, 0xffff
    s_mov_b32 s10, 9633792
    s_mov_b32 s11, 0x20000
    s_mov_b32 s12, s50
    s_and_b32 s13, s51, 0xffff
    s_mov_b32 s14, 1806336
    s_mov_b32 s15, 0x20000
    s_mov_b32 s16, s52
    s_and_b32 s17, s53, 0xffff
    s_mov_b32 s18, 165888
    s_mov_b32 s19, 0x20000
    s_mov_b32 s20, s54
    s_and_b32 s21, s55, 0xffff
    s_mov_b32 s22, 9633792
    s_mov_b32 s23, 0x20000
    s_mov_b32 s24, s58
    s_and_b32 s25, s59, 0xffff
    s_mov_b32 s26, 0x1000000
    s_mov_b32 s27, 0x20000
{body}
    s_memrealtime s[42:43]
    s_memtime s[60:61]
    s_waitcnt lgkmcnt(0)
    s_sub_u32 s44, s42, s40
    s_sub_u32 s60, s60, s46
    s_lshl_b32 s61, s2, 2
    s_add_u32 s61, s61, s3
    s_lshl_b32 s61, s61, 3
    v_mov_b32 v1, s61
    v_mov_b32 v2, s44
    v_mov_b32 v3, s60
    s_mov_b64 exec, 1
    buffer_store_dwordx2 v[2:3], v1, s[24:27], 0 offen
{sel}    s_min_u32 s44, s44, 1500
    s_mul_i32 s44, s44, {K}
    s_add_u32 s44, s44, 1500
P_spin:
    s_memrealtime s[42:43]
    s_waitcnt lgkmcnt(0)
    s_sub_u32 s42, s42, s40
    s_cmp_lt_u32 s42, s44
    s_cbranch_scc1 P_spin
P_end:
    s_endpgm
{post}
"""
KD = """.amdhsa_kernel probe_kernel
  .amdhsa_next_free_vgpr 512
  .amdhsa_next_free_sgpr 102
  .amdhsa_accum_offset 256
  .amdhsa_group_segment_fixed_size 0
  .amdhsa_kernarg_size 48
  .amdhsa_user_sgpr_count 2
  .amdhsa_user_sgpr_kernarg_segment_ptr 1
  .amdhsa_system_sgpr_workgroup_id_x 1
.end_amdhsa_kernel
"""
def build(body, K, who=None):
    s = MAIN
    old = [l for l in s.split("\n") if "@launch" in l][0]
    new = f"; @launch kernel=probe_kernel grid=(256,1,1) block=(256,1,1) lds=163840\n; @launch kernel={KN} grid=(256,1,1) block=(256,1,1) lds=162304"
    s = s.replace(old, new)
    i = s.index('.section .rodata,"a"')
    s = s[:i] + probe_src(body, K, who=who) + s[i:] + ".p2align 6\n" + KD
    return s

def dma(n, srd, wgstride, flags, wait=0, rot=False):
    L = [f"s_mul_i32 s30, s2, {wgstride}", "v_lshlrev_b32 v4, 4, v0", "v_add_u32 v4, s30, v4", "s_lshl_b32 s31, s3, 10"]
    if rot:
        L += ["s_lshr_b32 s33, s2, 3", f"s_mul_i32 s33, s33, {4096}"]
    for i in range(n):
        L.append(f"s_add_u32 m0, s31, {(i % 39) * 4096}")
        if rot:
            L.append(f"s_add_u32 s32, s33, {i * 4096}")
            L.append(f"s_cmp_ge_u32 s32, {n * 4096}")
            L.append(f"s_cselect_b32 s34, {n * 4096}, 0")
            L.append(f"s_sub_u32 s32, s32, s34")
        else:
            L.append(f"s_mov_b32 s32, {i * 4096}")
        L.append(f"buffer_load_dwordx4 v4, s[{srd}:{srd+3}], s32 offen {flags} lds")
    L.append(f"s_waitcnt vmcnt({wait})")
    return "\n".join("    " + l for l in L)


def slices(n, flags, s0=0, nsl=1):
    L = ["s_mul_i32 s30, s2, 37632", "v_lshrrev_b32 v4, 2, v0", "v_mul_u32_u24 v4, 192, v4", "v_and_b32 v5, 3, v0",
         "v_lshl_add_u32 v4, v5, 4, v4", "v_add_u32 v4, s30, v4", "s_lshl_b32 s31, s3, 10"]
    k = 0
    for sl in range(nsl):
        for i in range(n):
            L.append(f"s_add_u32 m0, s31, {k * 4096}")
            L.append(f"s_mov_b32 s32, {i * 64 * 192 + 64 * (s0 + sl)}")
            L.append(f"buffer_load_dwordx4 v4, s[8:11], s32 offen {flags} lds")
            k += 1
    L.append(f"s_waitcnt vmcnt(0)")
    return "\n".join("    " + l for l in L)
def stores(n, flags):
    L = ["s_mul_i32 s30, s2, 37632", "v_lshlrev_b32 v4, 4, v0", "v_add_u32 v4, s30, v4"]
    for i in range(n):
        L.append(f"s_mov_b32 s32, {i * 4096}")
        L.append(f"buffer_store_dwordx4 v[8:11], v4, s[20:23], s32 offen {flags}")
    L.append(f"s_waitcnt vmcnt(0)")
    return "\n".join("    " + l for l in L)

def tab(pad):
    pre = """    s_getpc_b64 s[70:71]
P_pc:
    s_lshl_b32 s72, s2, 3
    s_add_u32 s72, s72, P_tab-P_pc
    s_add_u32 s70, s70, s72
    s_addc_u32 s71, s71, 0
    s_load_dwordx2 s[74:75], s[70:71], 0"""
    post = f".p2align 6\n" + "\n".join("    s_endpgm" for _ in range(pad // 4)) + "\n.type P_tab,@object\nP_tab:\n" + "\n".join("    .long 1, 2" for _ in range(256)) + "\n.size P_tab, .-P_tab\n"
    return (pre, "", post)

ROWB = 224 * 192
def start(order, upto, pf=True, xf=""):
    L = []
    L += ["s_and_b32 s30, s2, 7", "s_lshl_b32 s30, s30, 5", "s_lshr_b32 s31, s2, 3", "s_add_u32 s30, s30, s31",
          "s_mul_i32 s31, s30, 2731", "s_lshr_b32 s31, s31, 16",
          "s_mul_i32 s32, s31, 24", "s_sub_u32 s32, s30, s32",
          f"s_mul_i32 s32, s32, {7 * ROWB}", f"s_mul_i32 s31, s31, {16 * 192}",
          "s_add_u32 s30, s31, s32", f"s_add_u32 s30, s30, {47 * ROWB + 47 * 192}",
          "v_lshlrev_b32 v4, 4, v2", "s_mul_i32 s33, s3, 864", "v_add_u32 v5, s33, v4", "s_mul_i32 s34, s3, 4608", "v_add_u32 v6, s34, v4"]
    cnt = []
    n = 0
    if pf:
        L += ["s_lshr_b32 s35, s2, 3", "s_mul_i32 s35, s35, 5184", "s_mul_i32 s36, s3, 1296", "s_add_u32 s35, s35, s36", "v_lshlrev_b32 v7, 7, v2", "s_mov_b64 exec, 0x7ff",
              "buffer_load_dword v8, v7, s[16:19], s35 offen", "s_mov_b64 exec, -1"]
    for it in order.split():
        k = int(it[1:])
        if it[0] == "L":
            L += [f"s_add_u32 m0, s33, {k * 3456}", f"s_add_u32 s35, s30, {k * ROWB}", "s_mov_b32 exec_hi, 0x3fffff",
                  f"buffer_load_dwordx4 v5, s[8:11], s35 offen {xf} lds", "s_mov_b64 exec, -1"]
            n += 1
        else:
            L += [f"s_add_u32 m0, s34, {65536 + (k % 4) * 18432}", f"s_mov_b32 s35, {k * 18432}"]
            for m in range(4):
                L.append(f"buffer_load_dwordx4 v6, s[16:19], s35 offen offset:{1024*m} lds")
            L += ["s_add_u32 m0, m0, 4096", "s_add_u32 s35, s35, 4096", "s_mov_b32 exec_hi, 0", f"buffer_load_dwordx4 v6, s[16:19], s35 offen lds", "s_mov_b64 exec, -1"]
            n += 5
        cnt.append(n)
    L += [f"s_waitcnt vmcnt({n - cnt[upto]})", "s_barrier"]
    return "\n".join("    " + l for l in L)

O1 = "L0 L3 W0 L1 L4 L2 L5 W1 L6 W2 L7"
O2 = "L0 L1 L2 L3 L4 L5 W0 W1 L6 W2 L7"
BODIES = {
    't3': start("L0 L3 W0", 2), 't5': start("L0 L3 W0 L1 L4", 4), 't7': start("L0 L3 W0 L1 L4 L2 L5", 6),
    't7a': start("L0 L3 W0 L1 L4 L2 L5", 2), 't7n': start("L0 L3 W0 L1 L4 L2 L5", 6, pf=False), 't8': start("L0 L3 W0 L1 L4 L2 L5 W1", 7),
    't8a': start("L0 L3 W0 L1 L4 L2 L5 W1", 2), 't8c': start("L0 L3 W0 L1 L4 L2 L5 W1", 6), 'l6': start("L0 L3 L1 L4 L2 L5", 5, pf=False),
    'l2': start("L0 L3", 1, pf=False), 'w0': start("W0", 0), 'w012': start("W0 W1 W2", 2),
    'tabn': tab(0), 'tabf': tab(20480),
    'o1a': start(O1, 2), 'o1b': start(O1, 4), 'o1c': start(O1, 6), 'o1d': start(O1, 7), 'o1e': start(O1, 9),
    'o2a': start(O2, 6), 'o2b': start(O2, 9), 'o1cn': start(O1, 6, pf=False), 'o1en': start(O1, 9, pf=False),
    'sl0': slices(3, ''), 'sl1': slices(3, '', 1), 'sl012': slices(3, '', 0, 3), 'x3pl': dma(3, 8, 37632, ''), 'x6pl': dma(6, 8, 37632, ''),
    'st1sc': stores(1, 'sc1'), 'st1pl': stores(1, ''), 'st9sc': stores(9, 'sc1'), 'st9pl': stores(9, ''), 'st9nt': stores(9, 'nt'),
    "karg": "",
    "x9nt": dma(9, 8, 37632, "nt"),
    "x9pl": dma(9, 8, 37632, ""),
    "x1nt": dma(1, 8, 37632, "nt"),
    "x4nt": dma(4, 8, 37632, "nt"),
    "w40": dma(40, 16, 0, ""),
    "w40rot": dma(40, 16, 0, "", rot=True),
    "w4": dma(4, 16, 0, ""),
    "code16": "\n".join(f"    v_add3_u32 v{4+(i%16)}, v2, v3, v2" for i in range(2048)),
}
if __name__ == "__main__":
    for spec in sys.argv[1:]:
        name, K = spec.split(":")[:2]
        open(f"p_{name}_{K}.s", "w").write(build(BODIES[name], int(K)))
        print(f"cdna_kernels/exp/p_{name}_{K}.s")
```
